```python
import torch

def _softmax(x, axis=-1):
    return torch.softmax(x, dim=axis)

def _gelu(x):
    return torch.nn.functional.gelu(x, approximate='tanh')

def _silu(x):
    return torch.nn.functional.silu(x)

def _sigmoid(x):
    return torch.sigmoid(x)

def _layernorm(x, axis=-1, eps=1e-05):
    m = x.mean(dim=axis, keepdim=True)
    v = x.var(dim=axis, keepdim=True, unbiased=False)
    return (x - m) / torch.sqrt(v + eps)

def _scatter_add(tgt, idx, src, axis=0):
    return tgt.clone().index_add_(axis, idx, src)

def _segment_sum(src, seg, n):
    out = torch.zeros((n,) + src.shape[1:], dtype=src.dtype)
    return out.index_add_(0, seg, src)

def _pad(x, pw):
    flat = tuple((v for pair in reversed(pw) for v in pair))
    return torch.nn.functional.pad(x, flat)
kernel_name = 'recurrent_scan__memory_aug_recurrent_mem_tr__glu_gated_reglu__prompt'

def setup_inputs():

    _w = lambda a: (lambda t: t.to(torch.bfloat16) if t.is_floating_point() else t)(torch.as_tensor(a))

    def _A_setup():
        B, S, Dm = (1, 2048, 448)
        H, Dh = (16, 256)
        M, seg = (8, 32)
        seg = min(seg, S)
        S = S // seg * seg
        return {'x': _w((lambda *s: torch.randn(*s, dtype=torch.bfloat16) * 0.1)(B, S, Dm)), 'mem0': _w((lambda *s: torch.randn(*s, dtype=torch.bfloat16) * 1.6)(B, M, Dm)), 'Wq': _w((lambda *s: torch.randn(*s, dtype=torch.bfloat16) * 0.8)(Dm, H, Dh) * Dm ** (-0.5)), 'Wk': _w((lambda *s: torch.randn(*s, dtype=torch.bfloat16) * 0.8)(Dm, H, Dh) * Dm ** (-0.5)), 'Wv': _w((lambda *s: torch.randn(*s, dtype=torch.bfloat16) * 1.6)(Dm, H, Dh) * Dm ** (-0.5)), 'Wo': _w((lambda *s: torch.randn(*s, dtype=torch.bfloat16) * 1.6)(H, Dh, Dm) * (H * Dh) ** (-0.5)), 'seg_len': seg}
    _A_in = _A_setup()

    def _B_setup():
        B, S, D, F = (1, 2048, 448, 1792)
        return {'x': _w((lambda *s: torch.randn(*s, dtype=torch.bfloat16) * 0.1)(B, S, D)), 'W_gate': _w((lambda *s: torch.randn(*s, dtype=torch.bfloat16) * 0.4)(D, F) * (2.0 / D) ** 0.5), 'W_up': _w((lambda *s: torch.randn(*s, dtype=torch.bfloat16) * 0.4)(D, F) * (2.0 / D) ** 0.5), 'W_down': _w((lambda *s: torch.randn(*s, dtype=torch.bfloat16) * 0.4)(F, D) * (1.0 / F) ** 0.5)}
    _B_in = _B_setup()
    return {'A_x': _A_in['x'], 'A_mem0': _A_in['mem0'], 'A_Wq': _A_in['Wq'], 'A_Wk': _A_in['Wk'], 'A_Wv': _A_in['Wv'], 'A_Wo': _A_in['Wo'], 'A_seg_len': _A_in['seg_len'], 'B_x': _B_in['x'], 'B_W_gate': _B_in['W_gate'], 'B_W_up': _B_in['W_up'], 'B_W_down': _B_in['W_down']}

def reference(A_x, A_mem0, A_Wq, A_Wk, A_Wv, A_Wo, A_seg_len, B_x, B_W_gate, B_W_up, B_W_down):

    def _A_ref(x, mem0, Wq, Wk, Wv, Wo, seg_len):
        B, S, Dm = x.shape
        H, Dh = (Wq.shape[1], Wq.shape[2])
        M = mem0.shape[1]
        scale = Dh ** (-0.5)
        n_seg = S // seg_len
        L = M + seg_len
        idx = torch.arange(L)
        mask = (idx[:, None] < M) | (idx[:, None] >= idx[None, :])
        mem = mem0
        outs = []
        for s in range(n_seg):
            xs = x[:, s * seg_len:(s + 1) * seg_len, :].clone()
            h = torch.concatenate([mem, xs], axis=1)
            q = torch.einsum('btd,dhe->bhte', h, Wq)
            k = torch.einsum('btd,dhe->bhte', h, Wk)
            v = torch.einsum('btd,dhe->bhte', h, Wv)
            scores = torch.einsum('bhqe,bhke->bhqk', q, k) * scale
            scores = torch.where(mask[None, None], scores, -1000000000.0)
            p = _softmax(scores, axis=-1)
            o = torch.einsum('bhqk,bhke->bhqe', p, v)
            o = torch.einsum('bhte,hed->btd', o, Wo)
            mem = o[:, :M, :].clone()
            outs.append(o[:, M:, :])
        return torch.concatenate(outs, axis=1)

    def _B_ref(x, W_gate, W_up, W_down):
        gate = torch.einsum('bsd,df->bsf', x, W_gate)
        up = torch.einsum('bsd,df->bsf', x, W_up)
        gate = gate * (lambda x, dt: x.to(dt))(gate > 0, gate.dtype)
        h = gate * up
        return torch.einsum('bsf,fd->bsd', h, W_down)
    x = A_x
    xn = _layernorm(x, axis=-1)
    s = _A_ref(xn, A_mem0, A_Wq, A_Wk, A_Wv, A_Wo, A_seg_len)
    g = _silu(_B_ref(xn, B_W_gate, B_W_up, B_W_down))
    return x + s * g
```

```python
import re

def R(i, n=1):
    if i < 256:
        assert i + n <= 256, (i, n)
        p = 'v'
    else:
        assert i + n <= 512, (i, n)
        p = 'a'; i -= 256
    return f"{p}{i}" if n == 1 else f"{p}[{i}:{i+n-1}]"
def SR(i, n=1):
    return f"s{i}" if n == 1 else f"s[{i}:{i+n-1}]"

class Asm:
    def __init__(self):
        self.L = []
        self.uid = 0
    def __call__(self, s):
        for line in s.split("\n"):
            line = line.strip()
            if line:
                self.L.append(line if line.endswith(":") else "    " + line)
    def lab(self, s): self.L.append(s + ":")
    def c(self, s): self.L.append("    ; " + s)
    def new(self, base):
        self.uid += 1
        return f"{base}_{self.uid}"
    def nop(self, states):
        while states > 0:
            k = min(states, 16)
            self(f"s_nop {k-1}")
            states -= k
    def text(self): return "\n".join(self.L) + "\n"

_reg_re = re.compile(r"\b([vas])\[(\d+):(\d+)\]|\b([vas])(\d+)\b")
def regs_of(op):
    out = []
    for m in _reg_re.finditer(op):
        if m.group(1):
            p, a, b = m.group(1), int(m.group(2)), int(m.group(3))
        else:
            p, a, b = m.group(4), int(m.group(5)), int(m.group(5))
        out += [(p, k) for k in range(a, b + 1)]
    if re.search(r"\bvcc\b", op): out.append(("s", "vcc"))
    if re.search(r"\bm0\b", op): out.append(("s", "m0"))
    if re.search(r"\bexec(_lo|_hi)?\b", op): out.append(("s", "exec"))
    return out
def split_ops(s):
    ops, depth, cur = [], 0, ""
    for ch in s:
        if ch == "[": depth += 1
        if ch == "]": depth -= 1
        if ch == "," and depth == 0:
            ops.append(cur.strip()); cur = ""
        else: cur += ch
    if cur.strip(): ops.append(cur.strip())
    return ops
TRANS = ("v_exp_f32", "v_log_f32", "v_rcp_f32", "v_rsq_f32", "v_sqrt_f32", "v_sin_f32", "v_cos_f32")
class I:
    def __init__(self, text):
        self.text = text
        t = text.split(";")[0].strip()
        self.is_label = t.endswith(":")
        self.op = t.split()[0] if t else ""
        rest = t[len(self.op):].strip()
        self.ops = split_ops(rest) if not self.is_label else []
        op = self.op
        self.kind = None; self.w = []; self.r = []; self.states = 1
        self.passes = 0; self.srcC = []; self.srcAB = []
        if not t or self.is_label:
            self.states = 0; self.kind = "none"; return
        if op == "s_nop":
            self.states = int(self.ops[0], 0) + 1; self.kind = "salu"; return
        o = self.ops
        if op.startswith("v_mfma") or op.startswith("v_smfmac"):
            self.kind = "mfma"
            self.passes = 8 if "32x32" in op else 4
            if "16x16x4_f32" in op or "32x32x2" in op: self.passes = 8 if "16x16x4" in op else 16
            self.w = regs_of(o[0]); self.srcAB = regs_of(o[1]) + regs_of(o[2])
            last = o[3].split()[0]
            if op.startswith("v_smfmac"):
                self.srcC = regs_of(o[0]); self.srcAB += regs_of(last); self.smf = True
            else:
                self.srcC = regs_of(last); self.smf = False
            self.r = self.srcAB + self.srcC
        elif op.startswith(("buffer_", "global_", "flat_")):
            self.kind = "vmem"
            allr = [regs_of(x) for x in o]
            lds = " lds" in (" " + t)
            if op in ("buffer_wbl2", "buffer_inv"): pass
            elif "store" in op or ("atomic" in op):
                self.r = sum(allr, [])
                if "atomic" in op and " sc0" in t: self.w = allr[0][:1] if op.startswith("buffer") else []
                self.store_data = allr[0] if op.startswith("buffer") else allr[1]
                self.wide = ("x3" in op or "x4" in op)
            elif lds:
                self.r = sum(allr, []) + [("s", "m0")]; self.dma = True
            else:
                self.w = allr[0]; self.r = sum(allr[1:], [])
        elif op.startswith("ds_"):
            self.kind = "ds"
            allr = [regs_of(x.split()[0]) if x else [] for x in o]
            if op.startswith(("ds_read", "ds_bpermute", "ds_permute", "ds_swizzle")) or "_rtn" in op:
                self.w = allr[0]; self.r = sum(allr[1:], [])
            else: self.r = sum(allr, [])
        elif op.startswith("v_"):
            self.kind = "valu"
            self.trans = any(op.startswith(x) for x in TRANS)
            self.dpp = "_dpp" in op or "quad_perm" in t or "row_" in t
            self.perm = op.startswith("v_permlane")
            allr = [regs_of(x.split()[0]) if x else [] for x in o]
            if op.startswith("v_cmp"):
                self.w = allr[0]; self.r = sum(allr[1:], [])
                if op.startswith("v_cmpx"): self.w += [("s", "exec")]
            elif self.perm and "swap" in op:
                self.w = allr[0] + allr[1]; self.r = allr[0] + allr[1]
            elif op.startswith(("v_add_co", "v_sub_co", "v_addc_co", "v_subb_co")):
                self.w = allr[0] + allr[1]; self.r = sum(allr[2:], [])
            else:
                self.w = allr[0]; self.r = sum(allr[1:], [])
                if op.startswith(("v_fmac", "v_pk_fmac", "v_writelane", "v_dot2c")): self.r += allr[0]
                if op.startswith("v_cndmask") and len(o) == 3: self.r.append(("s", "vcc"))
                if self.dpp: self.r += allr[0]
        elif op.startswith("s_"):
            self.kind = "salu"
            allr = [regs_of(x) for x in o]
            if op.startswith(("s_cmp", "s_cbranch", "s_branch", "s_waitcnt", "s_barrier", "s_sleep", "s_endpgm", "s_setprio", "s_bitcmp")):
                self.r = sum(allr, [])
            elif allr:
                self.w = allr[0]; self.r = sum(allr[1:], [])
                if "saveexec" in op: self.w = self.w + [("s", "exec")]
        else:
            self.kind = "other"
def _isv(r): return r[0] in ("v", "a")
def check_seq(seq, where=""):
    probs = []
    n = len(seq)
    real = [x for x in seq if x.kind != "none"]
    def gap(k, i):
        lastmf = 0 if real[k].kind == "mfma" else None
        lp = real[k].passes if real[k].kind == "mfma" else 0
        cur = 4 * real[k].states
        for q in range(k + 1, i + 1):
            x = real[q]; ti = cur
            if x.kind == "mfma":
                if lastmf is not None: ti = max(ti, lastmf + 4 * lp)
                lastmf = ti; lp = x.passes
            if q == i: return ti // 4 - 1
            cur = ti + 4 * x.states
    seq = real
    for i, c in enumerate(seq):
        for k in range(i - 1, max(-1, i - 25), -1):
            p = seq[k]
            dist = gap(k, i)
            if dist >= 24: break
            need = 0; why = ""
            def upd(v, w):
                nonlocal need, why
                if v > need: need, why = v, w
            pw = set(p.w); cr = set(c.r); cw = set(c.w)
            if p.kind == "valu":
                vw = {x for x in pw if _isv(x)}; sw = {x for x in pw if not _isv(x)}
                if c.kind == "mfma" and vw & cr: upd(2, "valu->mfma")
                if c.kind == "valu":
                    if c.dpp and vw & cr: upd(2, "valu->dpp")
                    if c.perm and vw & cr: upd(2, "valu->permlane")
                    if c.op.startswith(("v_readlane", "v_readfirstlane")) and vw & cr: upd(1, "valu->readlane")
                    if p.trans and not c.trans and vw & cr: upd(1, "trans->valu")
                    if sw & cr: upd(2, "valu sgpr->valu read")
                    if ("s", "exec") in sw and c.dpp: upd(5, "exec->dpp")
                if c.kind == "mfma" and ("s", "exec") in sw: upd(4, "exec->mfma")
                if c.kind == "vmem" and sw & cr: upd(5, "valu sgpr->vmem")
            if p.kind == "mfma":
                P = p.passes
                t_ab = {2: 5, 4: 8, 8: 12, 16: 20}[P]
                t_ov = {2: 4, 4: 6, 8: 10, 16: 18}[P]
                t_war = {2: 1, 4: 3, 8: 7, 16: 15}[P]
                if c.kind == "mfma":
                    if pw & set(c.srcAB): upd(t_ab, "mfma->mfma AB")
                    if pw & set(c.srcC):
                        if not (p.w == c.srcC and p.passes == c.passes): upd(t_ov, "mfma->mfma C overlap")
                    if pw & cw and not (p.w == c.w): upd(t_ov, "mfma waw partial")
                    if pw & cw and p.w == c.w and not (set(c.srcC) == pw): upd(t_ov, "mfma waw (C not D)")
                elif c.kind in ("valu",):
                    if pw & (cr | cw): upd(t_ab, "mfma->valu")
                    if set(p.srcC) & cw: upd(t_war, "mfma C war")
                elif c.kind in ("vmem", "ds"):
                    if pw & (cr | cw): upd(t_ab, "mfma->mem")
            if p.kind == "vmem" and getattr(p, "wide", False) and c.kind == "valu":
                if set(p.store_data) & cw: upd(2, "wide store war")
            if p.kind == "ds" and c.kind == "valu" and p.op.startswith(("ds_write_b128", "ds_write_b96")):
                pass
            if p.kind == "salu" and ("s", "m0") in pw and c.kind == "vmem" and getattr(c, "dma", False): upd(1, "m0->dma")
            if need > dist:
                probs.append(f"{where} need {need} have {dist} [{why}]: '{p.text.strip()}' -> '{c.text.strip()}'")
    return probs
def hazcheck(text):
    ins = [I(x) for x in text.split("\n") if x.strip() and not x.strip().startswith((";", ".", "//"))]
    probs = check_seq(ins, "lin")
    labels = {x.op[:-1]: i for i, x in enumerate(ins) if x.is_label}
    for i, x in enumerate(ins):
        if x.op.startswith(("s_cbranch", "s_branch")):
            tgt = x.ops[0]
            if tgt in labels:
                j = labels[tgt]
                seq = ins[max(0, i - 30):i + 1] + ins[j:j + 30]
                a = len(ins[max(0, i - 30):i + 1])
                pr = check_seq(seq, f"via {tgt}")
                probs += pr
    return sorted(set(probs))
```

```python
from asmlib import *
from sched import Item, Sched
from layouts import *

SWS = "s[4:7]"
SPIN_MAX = 1 << 18
PROF = False
OPT = dict(depth=3, stagger=20, warnA=2, warnB=1, ahead=2)

def stamp(a, k):
    if not PROF: return
    a("s_memtime s[46:47]")
    a("s_memrealtime s[74:75]")
    a("s_waitcnt lgkmcnt(0)")
    a("s_sub_u32 s48, s46, s49")
    a("s_mov_b32 s49, s46")
    a(f"s_add_u32 s{50+k}, s{50+k}, s48")
    a("s_cmp_eq_u32 s10, 30")
    a(f"s_cselect_b32 s{60+k}, s74, s{60+k}")
def stamp_init(a):
    if not PROF: return
    for k in range(20): a(f"s_mov_b32 s{50+k}, 0")
    a("s_memtime s[46:47]")
    a("s_waitcnt lgkmcnt(0)")
    a("s_mov_b32 s49, s46")

def wbase(unit):
    return 120 + 8 * unit if unit < 17 else 256 + 8 * (unit - 17)

def poll_warn(a, tag, creg, vaddr, soff, mask, fail, code=1):
    D = OPT["depth"]
    L = a.new("L_pw" + tag); OK = L + "_ok"
    a(f"s_mov_b64 exec, {mask}")
    a("s_mov_b32 s19, 0")
    for i in range(D):
        a(f"buffer_load_dword {R(creg+i)}, {R(vaddr)}, {SWS}, {soff} offen sc1")
        if i < D - 1: a.nop(OPT["stagger"])
    a.lab(L)
    for i in range(D):
        a(f"s_waitcnt vmcnt({D-1})")
        a(f"v_cmp_eq_u32 vcc, -1, {R(creg+i)}")
        a(f"s_cbranch_vccz {OK}")
        a(f"buffer_load_dword {R(creg+i)}, {R(vaddr)}, {SWS}, {soff} offen sc1")
    a("s_add_u32 s19, s19, 1")
    a(f"s_cmp_le_u32 s19, {SPIN_MAX}")
    a(f"s_cbranch_scc1 {L}")
    a(f"s_mov_b32 s72, {code}")
    a(f"s_branch {fail}")
    a.lab(OK)
    a("s_mov_b64 exec, -1")

def fetch_mem(a, lds_base):
    a(f"s_mov_b32 m0, {lds_base}")
    a("s_add_u32 s11, s14, 4096")
    for o in range(4): a(f"buffer_load_dwordx4 v1, {SWS}, s14 offen offset:{o*1024} sc1 lds")
    a(f"s_mov_b32 m0, {lds_base + 4096}")
    a("s_nop 0")
    for o in range(3): a(f"buffer_load_dwordx4 v1, {SWS}, s11 offen offset:{o*1024} sc1 lds")

def idx_setup(a, v):
    a("v_and_b32 v4, 8, v0")
    a("v_cmp_ne_u32 vcc, 0, v4")
    a(f"v_mov_b32 {R(v)}, 0x4444")
    a("v_mov_b32 v4, 0xeeee")
    a(f"v_cndmask_b32 {R(v)}, {R(v)}, v4, vcc")

def chk_items(M, Mrd, chk):
    its = []; prev = None
    for t in range(7):
        r = M + 4 * t
        if t == 0: txt = f"v_max3_u32 {R(chk)}, {R(r)}, {R(r+1)}, {R(r+2)}"; it = Item(txt, "valu", needs=[Mrd[t]]); its.append(it); prev = it
        if t == 0: txt = f"v_max_u32 {R(chk)}, {R(chk)}, {R(r+3)}"; it = Item(txt, "valu", [(prev, 0)]); its.append(it); prev = it
        else:
            it = Item(f"v_max3_u32 {R(chk)}, {R(chk)}, {R(r)}, {R(r+1)}", "valu", [(prev, 0)], needs=[Mrd[t]]); its.append(it); prev = it
            it = Item(f"v_max3_u32 {R(chk)}, {R(chk)}, {R(r+2)}, {R(r+3)}", "valu", [(prev, 0)]); its.append(it); prev = it
    it = Item(f"v_cmp_eq_u32 vcc, -1, {R(chk)}", "valu", [(prev, 0)]); its.append(it)
    return its, it

A_LDS_MEM = 0; A_LDS_S = 8192; A_LDS_KEYS = 0x8000; A_LDS_END = 0x18000
def role_A(a, stf, done, fail, timing=False):
    vWA, vWS, vCHK = 2, 3, 4
    vIDX, vXK, vXKp, vMK, vMK2, vMKL, vSW, vSX, vSM, vPX, vPM = 5, 6, 7, 8, 9, 10, 11, 12, 13, 14, 15
    M = 16; ACC = 44; TBF = 56; D2 = 60; TOP = 64; KW = 68; SA = 92; SEL = 104; SEL2 = SEL; vZERO = 0
    a.c("==== A role: s9 = head, s8 = wave")
    a("v_lshlrev_b32 v1, 4, v0")
    a(f"v_lshlrev_b32 {R(vWA)}, 2, v0")
    idx_setup(a, vIDX)
    a("v_and_b32 v16, 15, v0")
    a("v_lshrrev_b32 v17, 4, v0")
    a("v_and_b32 v18, 1, v17")
    a("v_bfe_u32 v19, v16, 2, 1")
    a("v_cmp_eq_u32 vcc, v18, v19")
    a("v_and_b32 v20, 1, v16")
    a("v_lshlrev_b32 v20, 4, v20")
    a("v_mov_b32 v21, 0x3f80")
    a("v_lshlrev_b32 v21, v20, v21")
    a("v_cndmask_b32 v21, 0, v21, vcc")
    a("v_and_b32 v20, 2, v16")
    a("v_cmp_eq_u32 vcc, 0, v20")
    a("s_nop 1")
    a("v_cndmask_b32 v22, 0, v21, vcc")
    a("v_cndmask_b32 v23, v21, 0, vcc")
    a("v_cmp_gt_u32 vcc, 8, v16")
    a("s_nop 1")
    a(f"v_cndmask_b32 {R(SEL)}, 0, v22, vcc")
    a(f"v_cndmask_b32 {R(SEL+1)}, 0, v23, vcc")
    a(f"v_cndmask_b32 {R(SEL+2)}, v22, 0, vcc")
    a(f"v_cndmask_b32 {R(SEL+3)}, v23, 0, vcc")
    a("s_and_b32 s26, s8, 1")
    a("s_lshr_b32 s11, s8, 1")
    a("s_mul_i32 s12, s11, 7")
    a("s_add_u32 s25, s12, 3")
    a("s_lshl_b32 s13, s26, 2")
    a("s_add_u32 s24, s12, s13")
    a("s_lshl_b32 s11, s8, 13")
    a(f"s_add_u32 s27, s11, {A_LDS_KEYS}")
    a(f"v_add_u32 {R(vXK)}, s27, v1")
    a("s_lshl_b32 s11, s26, 2")
    a(f"v_add_u32 {R(vXKp)}, s11, {R(vXK)}")
    a("v_and_b32 v18, 7, v0")
    a("v_lshrrev_b32 v19, 5, v0")
    a("v_lshl_add_u32 v18, v19, 4, v18")
    a("v_lshlrev_b32 v18, 4, v18")
    a("v_and_b32 v19, 1, v17")
    a("v_lshl_add_u32 v18, v19, 3, v18")
    a("s_lshl_b32 s11, s24, 9")
    a(f"v_add_u32 {R(vMK)}, s11, v18")
    a(f"v_add_u32 {R(vMK2)}, 1024, {R(vMK)}")
    a("s_lshl_b32 s11, s25, 9")
    a("s_lshl_b32 s12, s26, 7")
    a("s_add_u32 s11, s11, s12")
    a(f"v_add_u32 {R(vMKL)}, s11, v18")
    a("v_mul_u32_u24 v18, 160, v17")
    a("v_lshl_add_u32 v18, v16, 4, v18")
    a("s_lshl_b32 s11, s8, 11")
    a(f"s_add_u32 s11, s11, {A_LDS_S}")
    a(f"v_add_u32 {R(vSW)}, s11, v18")
    a("s_add_u32 s11, s11, 1920")
    a("v_mov_b32 v22, s11")
    a("v_mov_b32 v20, 0xff800000")
    a("v_mov_b32 v21, 0xff800000")
    a("ds_write_b64 v22, v[20:21]")
    a("s_lshl_b32 s11, s8, 2")
    a("v_add_u32 v18, s11, v17")
    a("v_lshrrev_b32 v19, 1, v16")
    a("v_and_b32 v19, 3, v19")
    a("v_mul_u32_u24 v19, 160, v19")
    a("v_lshl_add_u32 v19, v18, 4, v19")
    a("v_and_b32 v20, 1, v16")
    a("v_lshl_add_u32 v19, v20, 3, v19")
    a(f"v_add_u32 {R(vSM)}, {A_LDS_S}, v19")
    a("v_lshrrev_b32 v20, 3, v16")
    a("v_add_u32 v20, 1, v20")
    a("v_mul_u32_u24 v20, 640, v20")
    a(f"v_add_u32 {R(vSX)}, v20, {R(vSM)}")
    a("v_cmp_gt_u32 s[22:23], 4, v16")
    a(f"v_mov_b32 v20, {A_LDS_S + 1920}")
    a("s_nop 0")
    a(f"v_cndmask_b32 {R(vSM)}, v20, {R(vSM)}, s[22:23]")
    a("v_lshrrev_b32 v19, 3, v16")
    a("v_lshlrev_b32 v19, 7, v19")
    a("v_bfe_u32 v20, v16, 2, 1")
    a("v_lshl_add_u32 v19, v20, 8, v19")
    a("v_lshl_add_u32 v19, v18, 4, v19")
    a("v_and_b32 v20, 3, v16")
    a(f"v_lshl_add_u32 {R(vPX)}, v20, 2, v19")
    a("v_lshlrev_b32 v19, 4, v18")
    a(f"v_lshl_add_u32 {R(vPM)}, v16, 2, v19")
    a("v_cmp_gt_u32 s[20:21], 8, v16")
    a("s_and_b32 s11, s9, 3")
    a("s_lshl_b32 s11, s11, 1")
    a("s_add_u32 s11, s11, s8")
    a("s_lshl_b32 s11, s11, 2")
    a("v_cmp_eq_u32 vcc, 0, v0")
    a("v_mov_b32 v18, s11")
    a("v_mov_b32 v19, 0x7ffffff0")
    a(f"v_cndmask_b32 {R(vWS)}, v19, v18, vcc")
    a("s_lshr_b32 s11, s9, 2")
    a("s_lshl_b32 s12, s11, 7")
    a(f"s_add_u32 s31, s12, {WS_WP}")
    a("s_lshl_b32 s11, s11, 11")
    a("s_bfe_u32 s12, s9, 0x10001")
    a("s_lshl_b32 s12, s12, 10")
    a("s_add_u32 s11, s11, s12")
    a("s_and_b32 s12, s9, 1")
    a("s_lshl_b32 s12, s12, 9")
    a("s_add_u32 s11, s11, s12")
    a(f"s_add_u32 s15, s11, {WS_PXX}")
    a("s_lshl_b32 s11, s9, 7")
    a(f"s_add_u32 s16, s11, {WS_PXM}")
    a(f"s_mov_b32 s14, {WS_MF}")
    a(f"s_mov_b32 s30, {WS_WM}")
    a("s_lshl_b32 s11, s24, 10")
    a(f"s_add_u32 s17, s11, {WS_XF}")
    a("s_lshl_b32 s11, s25, 10")
    a(f"s_add_u32 s18, s11, {WS_XF}")
    a("s_sub_u32 s18, s18, 3072")
    vT, vTS, vTD = 108, 109, 110
    a("v_lshlrev_b32 v18, 7, v0")
    a(f"v_add_u32 {R(vT)}, s15, v18")
    a(f"v_mov_b32 {R(vTS)}, 8192")
    a("v_cmp_eq_u32 vcc, 4, v0")
    a("v_mov_b32 v18, s16")
    a("v_mov_b32 v19, 2048")
    a(f"v_cndmask_b32 {R(vT)}, {R(vT)}, v18, vcc")
    a(f"v_cndmask_b32 {R(vTS)}, {R(vTS)}, v19, vcc")
    a("v_cmp_eq_u32 vcc, 5, v0")
    a("v_mov_b32 v18, s31")
    a("v_mov_b32 v19, 512")
    a(f"v_cndmask_b32 {R(vT)}, {R(vT)}, v18, vcc")
    a(f"v_cndmask_b32 {R(vTS)}, {R(vTS)}, v19, vcc")
    a("s_mul_i32 s11, s9, 14")
    a("v_subrev_u32 v18, 6, v0")
    a("v_add_u32 v18, s11, v18")
    a("v_lshlrev_b32 v18, 7, v18")
    a(f"v_add_u32 v18, {WS_XF}, v18")
    a("v_mov_b32 v19, 28672")
    a("v_cmp_le_u32 vcc, 6, v0")
    a("s_nop 1")
    a(f"v_cndmask_b32 {R(vT)}, {R(vT)}, v18, vcc")
    a(f"v_cndmask_b32 {R(vTS)}, {R(vTS)}, v19, vcc")
    a("v_cmp_gt_u32 vcc, 20, v0")
    a("s_cmp_eq_u32 s8, 2")
    a("s_cselect_b64 vcc, vcc, 0")
    a("v_mov_b32 v18, 0x7ffffff0")
    a(f"v_cndmask_b32 {R(vT)}, v18, {R(vT)}, vcc")
    a(f"v_cndmask_b32 {R(vTS)}, 0, {R(vTS)}, vcc")
    def touch():
        a(f"buffer_load_dword {R(vTD)}, {R(vT)}, {SWS}, 0 offen sc1")
        a(f"v_add_u32 {R(vT)}, {R(vT)}, {R(vTS)}")
    for k in range(OPT["ahead"]): touch()
    a.c("load A weights")
    a("s_mul_i32 s11, s9, 28")
    a("s_lshl_b32 s12, s24, 1")
    a("s_add_u32 s12, s12, s11")
    a("s_mul_i32 s12, s12, 14336")
    a(f"s_add_u32 s12, s12, {WS_AF}")
    a("s_lshl_b32 s13, s25, 1")
    a("s_add_u32 s13, s13, s26")
    a("s_add_u32 s13, s13, s11")
    a("s_mul_i32 s13, s13, 14336")
    a(f"s_add_u32 s13, s13, {WS_AF}")
    for i in range(7):
        for t in range(7):
            u = i * 7 + t
            if i < 6: a(f"s_add_u32 s11, s12, {i*14336 + t*2048}")
            else: a(f"s_add_u32 s11, s13, {t*2048}")
            a(f"buffer_load_dwordx4 {R(wbase(u),4)}, v1, {SWS}, s11 offen nt")
            a(f"buffer_load_dwordx4 {R(wbase(u)+4,4)}, v1, {SWS}, s11 offen offset:1024 nt")
    def keys_dma_lines(buf):
        if OPT.get('no_k'): return []
        out = []
        for tt2 in range(2):
            grp = [f"s_add_u32 s11, {buf}, {tt2*4096}\ns_mov_b32 m0, s11\ns_add_u32 s12, s17, {tt2*14336}",
                   f"s_add_u32 s13, s18, {tt2*14336}"]
            for sl in range(3):
                grp.append(f"buffer_load_dwordx4 v1, {SWS}, s12 offen offset:{sl*1024} lds")
            grp.append(f"buffer_load_dwordx4 v1, {SWS}, s13 offen offset:3072 lds")
            out += grp
        out.append(f"s_add_u32 s17, s17, {2*14336}\ns_add_u32 s18, s18, {2*14336}")
        return out
    for x in keys_dma_lines("s27"): a(x)
    a("s_mov_b32 s10, 0")
    def zero_acc():
        for k in range(3):
            a(f"v_mov_b64 {R(ACC+4*k,2)}, 0"); a(f"v_mov_b64 {R(ACC+4*k+2,2)}, 0")
    zero_acc()
    a("s_waitcnt vmcnt(0) lgkmcnt(0)")
    if timing: a("s_memtime s[40:41]")
    stamp_init(a)
    LOOP = a.new("L_A_loop"); FETCH = a.new("L_A_fetch"); NOF = a.new("L_A_nofetch"); RETRY = a.new("L_A_retry")
    a.lab(LOOP)
    a("s_cmp_lg_u32 s8, 3")
    a(f"s_cbranch_scc1 {NOF}")
    a("s_cmp_eq_u32 s10, 0")
    a(f"s_cbranch_scc1 {FETCH}")
    poll_warn(a, "A", TOP, vWA, "s30", "0xfffffff", fail)
    stamp(a, 0)
    a.lab(FETCH)
    a("s_cmp_lg_u32 s8, 3")
    a(f"s_cbranch_scc1 {NOF}")
    fetch_mem(a, A_LDS_MEM)
    a.lab(NOF)
    a("s_waitcnt vmcnt(0)")
    a("s_barrier")
    stamp(a, 1)
    def keys_read(v, wn):
        kw = KW + 12 * wn
        out = []
        if v < 3:
            mk = vMK if v < 2 else vMK2
            o = 128 * v if v < 2 else 0
            out.append(f"ds_read2_b32 {R(kw,2)}, {R(mk)} offset0:{o} offset1:{o+32}")
            out.append(f"ds_read2_b32 {R(kw+2,2)}, {R(mk)} offset0:{o+1} offset1:{o+33}")
            out.append(f"ds_read_b128 {R(kw+4,4)}, {R(vXK)} offset:{v*1024}")
            out.append(f"ds_read_b128 {R(kw+8,4)}, {R(vXK)} offset:{4096+v*1024}")
        else:
            out.append(f"ds_read_b64 {R(kw,2)}, {R(vMKL)}")
            out.append(f"ds_read_b32 {R(kw+4)}, {R(vXKp)} offset:{3072}")
            out.append(f"ds_read_b32 {R(kw+5)}, {R(vXKp)} offset:{3072+8}")
            out.append(f"ds_read_b32 {R(kw+8)}, {R(vXKp)} offset:{4096+3072}")
            out.append(f"ds_read_b32 {R(kw+9)}, {R(vXKp)} offset:{4096+3072+8}")
        return out
    sc = Sched(a)
    Mrd = [Item(f"ds_read_b128 {R(M+4*t,4)}, v1 offset:{A_LDS_MEM + t*1024}", "raw", lds=1) for t in range(7)]
    for t in range(3): sc.emit(Mrd[t])
    main, side = [], []
    side += Mrd[3:]
    SM = {}
    order = [6, 0, 1, 2, 3, 4, 5]
    accof = {i: ACC + 4 * (k % 3) for k, i in enumerate(order)}
    nxt = {order[k]: order[k + 3] for k in range(4)}
    for k, i in enumerate(order):
        for t in range(7):
            it = Item(f"v_smfmac_f32_16x16x64_bf16 {R(accof[i],4)}, {R(M+4*t,4)}, {R(wbase(i*7+t),8)}, {R(vIDX)}", "smf", needs=[Mrd[t]] if k == 0 else [])
            SM[i, t] = it; main.append(it)
            if (k, t) == (2, 1): brk = len(main)
    vorder = [3, 0, 1, 2]
    win = {v: k & 1 for k, v in enumerate(vorder)}
    Krd = {}
    for v in vorder[:2]:
        Krd[v] = [Item(x, "raw", [(Mrd[6], 0)], lds=1) for x in keys_read(v, win[v])]
        side += Krd[v]
    chk, chk_last = chk_items(M, Mrd, vCHK)
    br = Item(f"s_cbranch_vccnz {RETRY}", "raw", [(chk_last, 0)])
    main.insert(brk, br)
    bulk = []
    prev = br
    lines = []
    lines += [f"buffer_load_dword {R(vTD)}, {R(vT)}, {SWS}, 0 offen sc1"]
    for x in lines:
        it = Item(x, "bulk", [(prev, 0)]); bulk.append(it); prev = it
    tadd = Item(f"v_add_u32 {R(vT)}, {R(vT)}, {R(vTS)}", "valu", [(prev, 0)]); bulk.append(tadd)
    cvT, MT, cvO, SS = {}, {}, {}, {}
    post = []
    pv = None
    for kv, v in enumerate(vorder):
        tiles = [2 * v, 2 * v + 1] if v < 3 else [6]
        tb = TBF; d2 = D2; top = TOP
        for k, i in enumerate(tiles):
            acc = accof[i]
            dep = [(MT[pv], 0)] if pv is not None else [(br, 0)]
            c0 = Item(f"v_cvt_pk_bf16_f32 {R(tb+2*k)}, {R(acc)}, {R(acc+1)}", "valu", [(SM[i,6], 8)] + dep)
            c1 = Item(f"v_cvt_pk_bf16_f32 {R(tb+2*k+1)}, {R(acc+2)}, {R(acc+3)}", "valu", [(c0, 0)])
            post += [c0, c1]; cvT[i] = c1
            if i in nxt:
                z0 = Item(f"v_mov_b64 {R(acc,2)}, 0", "valu", [(c1, 0)])
                z1 = Item(f"v_mov_b64 {R(acc+2,2)}, 0", "valu", [(z0, 0)])
                post += [z0, z1]
                SM[nxt[i], 0].deps.append((z1, 2))
        dep_d2 = [(cvO[pv], 0)] if pv is not None else []
        deps = [(cvT[i], 2) for i in tiles] + dep_d2
        if v < 3: txt = f"v_mfma_f32_16x16x32_bf16 {R(d2,4)}, {R(tb,4)}, {R(SEL,4)}, 0"
        else: txt = f"v_mfma_f32_16x16x16_bf16 {R(d2,4)}, {R(tb,2)}, {R(SEL2,2)}, 0"
        MT[v] = Item(txt, "mfma", deps); post.append(MT[v])
        dep_top = [(SS[pv][2], 0)] if pv is not None else []
        if v < 3:
            o0 = Item(f"v_cvt_pk_bf16_f32 {R(top)}, {R(d2)}, {R(d2+1)}", "valu", [(MT[v], 8)] + dep_top)
            o1 = Item(f"v_cvt_pk_bf16_f32 {R(top+2)}, {R(d2+2)}, {R(d2+3)}", "valu", [(o0, 0)])
            o2 = Item(f"v_mov_b32_dpp {R(top+1)}, {R(top)} row_ror:8 row_mask:0xf bank_mask:0xf", "valu", [(o0, 2)])
            o3 = Item(f"v_mov_b32_dpp {R(top+3)}, {R(top+2)} row_ror:8 row_mask:0xf bank_mask:0xf", "valu", [(o1, 2), (o2, 0)])
            post += [o0, o1, o2, o3]; cvO[v] = o3
        else:
            o0 = Item(f"v_cvt_pk_bf16_f32 {R(top)}, {R(d2)}, {R(d2+1)}", "valu", [(MT[v], 8)] + dep_top)
            o1 = Item(f"v_cvt_pk_bf16_f32 {R(top+1)}, {R(d2+2)}, {R(d2+3)}", "valu", [(o0, 0)])
            post += [o0, o1]; cvO[v] = o1
        kw = KW + 12 * win[v]
        ss = []
        for kt in range(3):
            c = "0" if pv is None else R(SA+4*kt,4)
            if v < 3: txt = f"v_mfma_f32_16x16x32_bf16 {R(SA+4*kt,4)}, {R(kw+4*kt,4)}, {R(top,4)}, {c}"
            else: txt = f"v_mfma_f32_16x16x16_bf16 {R(SA+4*kt,4)}, {R(kw+4*kt,2)}, {R(top,2)}, {c}"
            it = Item(txt, "mfma", [(cvO[v], 2)] + ([(ss[-1], 0)] if ss else []) + ([(SS[pv][kt], 0)] if pv is not None else []), needs=Krd[v])
            ss.append(it); post.append(it)
        SS[v] = ss
        if kv + 2 <= 3:
            v2 = vorder[kv + 2]
            Krd[v2] = [Item(x, "raw", [(ss[2], 0)], lds=1) for x in keys_read(v2, win[v2])]
            post += Krd[v2]
        pv = v
    side = side + chk + post + bulk
    sc.run(main, side)
    a.nop(8)
    stamp(a, 2)
    a("s_mov_b64 exec, s[20:21]")
    for kt in range(3):
        a(f"ds_write_b128 {R(vSW)}, {R(SA+4*kt,4)} offset:{kt*640}")
    a("s_mov_b64 exec, -1")
    zero_acc()
    a("s_waitcnt lgkmcnt(0)")
    a("s_barrier")
    stamp(a, 3)
    SK = a.new("L_A_nosm")
    a("s_cmp_ge_u32 s8, 2")
    a(f"s_cbranch_scc1 {SK}")
    x, m, t0 = M, M + 8, M + 16
    def warn(pt):
        if OPT["warnA"] == pt: a(f"buffer_store_dword {R(vZERO)}, {R(vWS)}, {SWS}, s31 offen {stf}")
    for w in range(4):
        a(f"ds_read_b64 {R(x+2*w,2)}, {R(vSX)} offset:{w*2048}")
        a(f"ds_read_b64 {R(m+2*w,2)}, {R(vSM)} offset:{w*2048}")
    warn(0)
    a("s_waitcnt lgkmcnt(4)")
    a(f"v_pk_add_f32 {R(x,2)}, {R(x,2)}, {R(x+2,2)}")
    a(f"v_pk_add_f32 {R(m,2)}, {R(m,2)}, {R(m+2,2)}")
    a("s_waitcnt lgkmcnt(0)")
    a(f"v_pk_add_f32 {R(x+4,2)}, {R(x+4,2)}, {R(x+6,2)}")
    a(f"v_pk_add_f32 {R(m+4,2)}, {R(m+4,2)}, {R(m+6,2)}")
    a(f"v_pk_add_f32 {R(x,2)}, {R(x,2)}, {R(x+4,2)}")
    a(f"v_pk_add_f32 {R(m,2)}, {R(m,2)}, {R(m+4,2)}")
    warn(1)
    a(f"v_max_f32 {R(t0)}, {R(x)}, {R(x+1)}")
    a(f"v_max3_f32 {R(t0)}, {R(t0)}, {R(m)}, {R(m+1)}")
    for pat in ("quad_perm:[1,0,3,2]", "quad_perm:[2,3,0,1]", "row_half_mirror", "row_mirror"):
        a("s_nop 1")
        a(f"v_max_f32_dpp {R(t0)}, {R(t0)}, {R(t0)} {pat} row_mask:0xf bank_mask:0xf")
    warn(2)
    for r in (x, x+1, m, m+1): a(f"v_sub_f32 {R(r)}, {R(r)}, {R(t0)}")
    for r in (x, x+1, m, m+1): a(f"v_exp_f32 {R(r)}, {R(r)}")
    warn(3)
    a("s_nop 0")
    a(f"v_add_f32 {R(t0)}, {R(x)}, {R(x+1)}")
    a(f"v_add_f32 {R(t0+1)}, {R(m)}, {R(m+1)}")
    a(f"v_add_f32 {R(t0)}, {R(t0)}, {R(t0+1)}")
    for pat in ("quad_perm:[1,0,3,2]", "quad_perm:[2,3,0,1]", "row_half_mirror", "row_mirror"):
        a("s_nop 1")
        a(f"v_add_f32_dpp {R(t0)}, {R(t0)}, {R(t0)} {pat} row_mask:0xf bank_mask:0xf")
    warn(4)
    a(f"v_rcp_f32 {R(t0)}, {R(t0)}")
    a("s_nop 0")
    a(f"v_pk_mul_f32 {R(x,2)}, {R(x,2)}, {R(t0,2)} op_sel_hi:[1,0]")
    a(f"v_pk_mul_f32 {R(m,2)}, {R(m,2)}, {R(t0,2)} op_sel_hi:[1,0]")
    a(f"v_cvt_pk_bf16_f32 {R(x)}, {R(x)}, {R(x+1)}")
    a(f"v_cvt_pk_bf16_f32 {R(m)}, {R(m)}, {R(m+1)}")
    a(f"v_min_u32 {R(x)}, -2, {R(x)}")
    a(f"v_min_u32 {R(m)}, -2, {R(m)}")
    warn(5)
    a(f"buffer_store_dword {R(x)}, {R(vPX)}, {SWS}, s15 offen {stf}")
    a("s_mov_b64 exec, s[22:23]")
    a(f"buffer_store_dword {R(m)}, {R(vPM)}, {SWS}, s16 offen {stf}")
    a("s_mov_b64 exec, -1")
    if PROF and OPT.get("ackA"):
        stamp(a, 6)
        a("s_waitcnt vmcnt(0)")
        stamp(a, 7)
    a.lab(SK)
    stamp(a, 4)
    a("s_add_u32 s10, s10, 1")
    a("s_cmp_ge_u32 s10, 63")
    a(f"s_cbranch_scc1 {done}")
    for x in keys_dma_lines("s27"): a(x)
    stamp(a, 5)
    a("s_add_u32 s14, s14, 7168")
    a("s_add_u32 s15, s15, 8192")
    a("s_add_u32 s16, s16, 2048")
    a("s_add_u32 s30, s30, 128")
    a("s_add_u32 s31, s31, 512")
    a(f"s_branch {LOOP}")
    a.lab(RETRY)
    a("s_mov_b32 s72, 4")
    a("s_add_u32 s19, s19, 1")
    a(f"s_cmp_gt_u32 s19, {SPIN_MAX}")
    a(f"s_cbranch_scc1 {fail}")
    a("s_add_u32 s70, s70, 1")
    a("s_waitcnt lgkmcnt(0)")
    a.nop(8)
    zero_acc()
    a("s_barrier")
    a(f"s_branch {FETCH}")

B_LDS_MEM = 0; B_LDS_W = 8192; B_LDS_U = B_LDS_W + 4 * 14336; B_LDS_RED = B_LDS_U + 2 * 32768; B_LDS_END = B_LDS_RED + 4 * 1280
def role_B(a, stf, done, fail, timing=False, yonly=False):
    vWA, vWS, vCHK = 2, 3, 4
    vIDX, vWL, vUL, vPM, vRW, vR0, vR1, vMS, vZERO = 5, 6, 7, 8, 9, 10, 11, 12, 13
    M = 16; YB = 44; ACC = 60; U = 72; P = 104; CAN = 112
    vT, vTS, vTD = 14, 15, 119
    vONE, vCO = 116, 117
    a.c("==== B role: s9 = j (column block), s8 = wave" + (" [Y only]" if yonly else ""))
    a("v_lshlrev_b32 v1, 4, v0")
    a(f"v_lshlrev_b32 {R(vWA)}, 2, v0")
    idx_setup(a, vIDX)
    a("v_and_b32 v16, 15, v0")
    a("v_lshrrev_b32 v17, 4, v0")
    a("s_mul_i32 s11, s8, 14336")
    a(f"s_add_u32 s27, s11, {B_LDS_W}")
    a(f"v_add_u32 {R(vWL)}, s27, v1")
    a(f"v_mov_b32 {R(vZERO)}, 0")
    a("s_lshl_b32 s12, s9, 1")
    if yonly:
        a(f"v_lshlrev_b32 {R(vWA)}, 7, v0")
        a(f"v_add_u32 {R(vWA)}, 124, {R(vWA)}")
        a(f"s_mov_b32 s14, {WS_MG}")
        a("s_mul_i32 s11, s8, 56")
        a("s_add_u32 s11, s11, s12")
        a("s_lshl_b32 s11, s11, 10")
        a(f"s_add_u32 s18, s11, {WS_YF}")
        a(f"v_mov_b32 {R(vONE)}, 1")
        a("v_cmp_eq_u32 vcc, 0, v0")
        a("s_cmp_eq_u32 s8, 0")
        a("s_cselect_b64 vcc, vcc, 0")
        a("v_mov_b32 v18, 0x7ffffff0")
        a(f"v_cndmask_b32 {R(vCO)}, v18, 0, vcc")
        a(f"s_mov_b32 s33, {CNT_Y}")
    else:
        a("s_lshl_b32 s11, s8, 13")
        a(f"s_add_u32 s26, s11, {B_LDS_U}")
        a(f"v_add_u32 {R(vUL)}, s26, v1")
        a("v_lshrrev_b32 v18, 5, v0")
        a("v_bfe_u32 v19, v0, 3, 1")
        a("v_lshl_add_u32 v18, v18, 1, v19")
        a("s_lshl_b32 s11, s8, 2")
        a("v_add_u32 v18, s11, v18")
        a("v_lshlrev_b32 v18, 7, v18")
        a("v_and_b32 v19, 7, v0")
        a(f"v_lshl_add_u32 {R(vPM)}, v19, 4, v18")
        a("v_mul_u32_u24 v18, 272, v17")
        a("v_lshl_add_u32 v18, v16, 4, v18")
        a("s_mul_i32 s11, s8, 1280")
        a(f"s_add_u32 s11, s11, {B_LDS_RED}")
        a(f"v_add_u32 {R(vRW)}, s11, v18")
        a("v_lshrrev_b32 v18, 5, v0")
        a("v_bfe_u32 v19, v0, 4, 1")
        a("v_lshl_add_u32 v18, v18, 1, v19")
        a("v_mul_u32_u24 v18, 272, v18")
        a("v_and_b32 v19, 3, v0")
        a("v_lshl_add_u32 v18, v19, 5, v18")
        a("v_bfe_u32 v19, v0, 2, 2")
        a("v_lshl_add_u32 v18, v19, 2, v18")
        a("s_lshl_b32 s11, s8, 7")
        a(f"s_add_u32 s11, s11, {B_LDS_RED}")
        a(f"v_add_u32 {R(vR0)}, s11, v18")
        a(f"v_add_u32 {R(vR1)}, 16, {R(vR0)}")
        a("s_lshl_b32 s11, s9, 9")
        a("s_lshl_b32 s13, s8, 8")
        a("s_add_u32 s11, s11, s13")
        a("v_lshlrev_b32 v18, 2, v0")
        a(f"v_add_u32 {R(vMS)}, s11, v18")
        a("s_and_b32 s13, s8, 1")
        a("s_add_u32 s11, s12, s13")
        a("s_lshl_b32 s11, s11, 2")
        a("v_cmp_eq_u32 vcc, 0, v0")
        a("v_mov_b32 v18, s11")
        a("v_mov_b32 v19, 0x7ffffff0")
        a(f"v_cndmask_b32 {R(vWS)}, v19, v18, vcc")
        a(f"s_mov_b32 s14, {WS_MF}")
        a(f"s_mov_b32 s30, {WS_WM}")
        a("s_lshl_b32 s11, s8, 7")
        a(f"s_add_u32 s31, s11, {WS_WP}")
        a("s_lshl_b32 s11, s8, 11")
        a(f"s_add_u32 s15, s11, {WS_PXX}")
        a(f"s_mov_b32 s16, {WS_PXM}")
        a("s_mul_i32 s11, s8, 112")
        a("s_add_u32 s11, s11, s12")
        a("s_lshl_b32 s11, s11, 10")
        a(f"s_add_u32 s17, s11, {WS_UF}")
        a("v_lshlrev_b32 v18, 7, v0")
        a("s_lshl_b32 s11, s9, 9")
        a(f"s_add_u32 s11, s11, {WS_MF + 7168}")
        a(f"v_add_u32 {R(vT)}, s11, v18")
        a(f"v_mov_b32 {R(vTS)}, 7168")
        a("v_cmp_eq_u32 vcc, 4, v0")
        a(f"v_mov_b32 v18, {WS_WM + 128}")
        a("v_mov_b32 v19, 128")
        a(f"v_cndmask_b32 {R(vT)}, {R(vT)}, v18, vcc")
        a(f"v_cndmask_b32 {R(vTS)}, {R(vTS)}, v19, vcc")
        a("v_cmp_gt_u32 vcc, 5, v0")
        a("s_cmp_eq_u32 s8, 2")
        a("s_cselect_b64 vcc, vcc, 0")
        a("v_mov_b32 v18, 0x7ffffff0")
        a(f"v_cndmask_b32 {R(vT)}, v18, {R(vT)}, vcc")
        a(f"v_cndmask_b32 {R(vTS)}, 0, {R(vTS)}, vcc")
        for k in range(OPT["ahead"]):
            a(f"buffer_load_dword {R(vTD)}, {R(vT)}, {SWS}, 0 offen sc1")
            a(f"v_add_u32 {R(vT)}, {R(vT)}, {R(vTS)}")
    a.c("load B weights")
    a("s_mul_i32 s11, s8, 112")
    a("s_add_u32 s11, s11, s12")
    a("s_mul_i32 s11, s11, 14336")
    a(f"s_add_u32 s13, s11, {WS_BF}")
    def toff(q): return ((q >> 1) * 28 + (q & 1)) * 14336
    for q in range(7):
        for t in range(7):
            u = q * 7 + t
            a(f"s_add_u32 s11, s13, {toff(q) + t*2048}")
            a(f"buffer_load_dwordx4 {R(wbase(u),4)}, v1, {SWS}, s11 offen nt")
            a(f"buffer_load_dwordx4 {R(wbase(u)+4,4)}, v1, {SWS}, s11 offen offset:1024 nt")
    for k in range(4):
        a(f"s_add_u32 s11, s27, {k*4096}")
        a("s_mov_b32 m0, s11")
        a(f"s_add_u32 s11, s13, {toff(7) + k*4096}")
        for o in range(4):
            if k * 4 + o < 14:
                a(f"buffer_load_dwordx4 v1, {SWS}, s11 offen offset:{o*1024} nt lds")
    def u_dma_lines(bufreg):
        if OPT.get('no_u'): return []
        out = []
        for hd in range(4):
            out.append(f"s_add_u32 s11, {bufreg}, {hd*2048}\ns_mov_b32 m0, s11\ns_add_u32 s12, s17, {hd*28672}")
            out.append(f"buffer_load_dwordx4 v1, {SWS}, s12 offen sc1 lds")
            out.append(f"buffer_load_dwordx4 v1, {SWS}, s12 offen offset:1024 sc1 lds")
        return out
    def u_ready(rbreg):
        if OPT.get('no_uflag'): return
        L = a.new("L_B_ur")
        a(f"s_cmp_lt_u32 {rbreg}, s35")
        a(f"s_cbranch_scc1 {L}_ok")
        a("s_mov_b64 exec, 0xffff")
        a("v_lshlrev_b32 v4, 7, v0")
        a("s_mov_b32 s19, 0")
        a(f"s_mov_b32 s13, {CNT_U}")
        a.lab(L)
        a(f"buffer_load_dword {R(vTD)}, v4, {SWS}, s13 offen sc1")
        a("s_waitcnt vmcnt(0)")
        a(f"v_cmp_le_u32 vcc, 28, {R(vTD)}")
        a("s_nop 1")
        a("s_ff0_i32_b32 s35, vcc_lo")
        a(f"s_cmp_lt_u32 {rbreg}, s35")
        a(f"s_cbranch_scc1 {L}_got")
        a("s_sleep 4")
        a("s_add_u32 s19, s19, 1")
        a(f"s_cmp_le_u32 s19, {SPIN_MAX * 16}")
        a(f"s_cbranch_scc1 {L}")
        a("s_mov_b32 s72, 6")
        a(f"s_branch {fail}")
        a.lab(L + "_got")
        a("s_mov_b64 exec, -1")
        a.lab(L + "_ok")
    def y_store_lines():
        out = []
        for aa in range(2):
            for c in range(2):
                out.append(f"s_add_u32 s11, s18, {(aa*28 + c)*1024}\nbuffer_store_dwordx4 {R(YB+8*c+4*aa,4)}, v1, {SWS}, s11 offen sc1")
        return out
    if not yonly:
        a("s_mov_b32 s35, 0")
        a("s_mov_b32 s34, 0")
        u_ready("s34")
        for x in u_dma_lines("s26"): a(x)
        a(f"s_add_u32 s17, s17, {16*28672}")
        a("s_mov_b32 s25, 0")
    a("s_mov_b32 s10, 0")
    a("s_waitcnt vmcnt(0)")
    def win_prefetch():
        for t in range(4):
            a(f"ds_read_b128 {R(U+8*t,4)}, {R(vWL)} offset:{t*2048}")
            a(f"ds_read_b128 {R(U+8*t+4,4)}, {R(vWL)} offset:{t*2048+1024}")
    def zero_acc(n=3):
        for k in range(n):
            a(f"v_mov_b64 {R(ACC+4*k,2)}, 0"); a(f"v_mov_b64 {R(ACC+4*k+2,2)}, 0")
    win_prefetch()
    zero_acc()
    stamp_init(a)
    LOOP = a.new("L_B_loop"); FETCH = a.new("L_B_fetch"); NOF = a.new("L_B_nofetch"); RETRY = a.new("L_B_retry")
    a.lab(LOOP)
    a("s_cmp_lg_u32 s8, 3")
    a(f"s_cbranch_scc1 {NOF}")
    a("s_cmp_eq_u32 s10, 0")
    a(f"s_cbranch_scc1 {FETCH}")
    if yonly:
        L = a.new("L_Y_poll")
        a("s_mov_b32 exec_lo, -1")
        a("s_mov_b32 exec_hi, 0xffffff")
        a("s_mov_b32 s19, 0")
        a.lab(L)
        a(f"buffer_load_dword {R(CAN)}, {R(vWA)}, {SWS}, s14 offen sc1")
        a("s_waitcnt vmcnt(0)")
        a(f"v_cmp_eq_u32 vcc, -1, {R(CAN)}")
        a(f"s_cbranch_vccz {L}_ok")
        a("s_sleep 1")
        a("s_add_u32 s19, s19, 1")
        a(f"s_cmp_le_u32 s19, {SPIN_MAX * 64}")
        a(f"s_cbranch_scc1 {L}")
        a("s_mov_b32 s72, 7")
        a(f"s_branch {fail}")
        a.lab(L + "_ok")
        a("s_mov_b64 exec, -1")
    else:
        poll_warn(a, "B", CAN, vWA, "s30", "0xfffffff", fail, 2)
    stamp(a, 0)
    a.lab(FETCH)
    a("s_cmp_lg_u32 s8, 3")
    a(f"s_cbranch_scc1 {NOF}")
    fetch_mem(a, B_LDS_MEM)
    a.lab(NOF)
    a("s_waitcnt vmcnt(0) lgkmcnt(0)")
    a("s_barrier")
    stamp(a, 1)
    if not yonly:
        SKU = a.new("L_B_nou")
        a("s_cmp_ge_u32 s10, 62")
        a(f"s_cbranch_scc1 {SKU}")
        a("s_add_u32 s34, s10, 1")
        a("s_lshr_b32 s34, s34, 2")
        u_ready("s34")
        a("s_xor_b32 s12, s25, 32768")
        a("s_add_u32 s24, s26, s12")
        for x in u_dma_lines("s24"): a(x)
        a.lab(SKU)
    sc = Sched(a)
    Mrd = [Item(f"ds_read_b128 {R(M+4*t,4)}, v1 offset:{B_LDS_MEM + t*1024}", "raw", lds=1) for t in range(7)]
    for t in range(3): sc.emit(Mrd[t])
    order = [("L", range(0, 4)), (0, range(7)), ("L", range(4, 7))] + [(q, range(7)) for q in range(1, 7)]
    accof = {"L": 2, 0: 0, 1: 1, 2: 0, 3: 2, 4: 1, 5: 0, 6: 2}
    main, side = [], []
    side += Mrd[3:]
    SM = {}
    for q, ts in order:
        for t in ts:
            w = R(U + 8 * (t if t < 4 else t - 4), 8) if q == "L" else R(wbase(q * 7 + t), 8)
            it = Item(f"v_smfmac_f32_16x16x64_bf16 {R(ACC+4*accof[q],4)}, {R(M+4*t,4)}, {w}, {R(vIDX)}", "smf", needs=[Mrd[t]])
            SM[q, t] = it; main.append(it)
            if (q, t) == (1, 0): brk = len(main)
    rd = [Item(f"ds_read_b128 {R(U+8*(t-4)+4*hb,4)}, {R(vWL)} offset:{t*2048+hb*1024}", "raw", [(SM["L", 3], 0), (Mrd[6], 0)], lds=1) for t in range(4, 7) for hb in range(2)]
    side += rd
    for t in range(4, 7): SM["L", t].needs += rd[2*(t-4):2*(t-4)+2]
    chk, chk_last = chk_items(M, Mrd, vCHK)
    br = Item(f"s_cbranch_vccnz {RETRY}", "raw", [(chk_last, 0)])
    main.insert(brk, br)
    users = {0: [0, 2, 5], 1: [1, 4], 2: ["L", 3, 6]}
    bulk = []
    if not yonly:
        prev = br
        for x in [f"s_add_u32 s17, s17, {16*28672}", f"buffer_load_dword {R(vTD)}, {R(vT)}, {SWS}, 0 offen sc1"]:
            it = Item(x, "bulk", [(prev, 0)]); bulk.append(it); prev = it
        bulk.append(Item(f"v_add_u32 {R(vT)}, {R(vT)}, {R(vTS)}", "valu", [(prev, 0)]))
    post = []
    for q in [0, "L", 1, 2, 3, 4, 5, 6]:
        qq = 7 if q == "L" else q
        hd, c = qq >> 1, qq & 1
        acc = ACC + 4 * accof[q]
        dst = YB + 8 * c + 4 * (hd >> 1) + (hd & 1)
        c0 = Item(f"v_cvt_pk_bf16_f32 {R(dst)}, {R(acc)}, {R(acc+1)}", "valu", [(SM[q, 6], 8), (br, 0)])
        c1 = Item(f"v_cvt_pk_bf16_f32 {R(dst+2)}, {R(acc+2)}, {R(acc+3)}", "valu", [(c0, 0)])
        post += [c0, c1]
        us = users[accof[q]]; k = us.index(q)
        z0 = Item(f"v_mov_b64 {R(acc,2)}, 0", "valu", [(c1, 0)])
        z1 = Item(f"v_mov_b64 {R(acc+2,2)}, 0", "valu", [(z0, 0)])
        if k + 1 < len(us):
            post += [z0, z1]
            SM[us[k + 1], 0].deps.append((z1, 2))
        elif accof[q] in (0, 1) and not yonly:
            post += [z0, z1]
    sc.run(main, side + chk + post + bulk)
    stamp(a, 2)
    def retry_block():
        a.lab(RETRY)
        a("s_mov_b32 s72, 4")
        a("s_add_u32 s19, s19, 1")
        a(f"s_cmp_gt_u32 s19, {SPIN_MAX * 64}")
        a(f"s_cbranch_scc1 {fail}")
        a("s_add_u32 s70, s70, 1")
        a("s_waitcnt lgkmcnt(0)")
        a.nop(8)
        zero_acc()
        win_prefetch()
        a("s_waitcnt lgkmcnt(0)")
        a("s_barrier")
        a(f"s_branch {FETCH}")
    if yonly:
        for x in y_store_lines(): a(x)
        win_prefetch()
        zero_acc()
        a("s_waitcnt vmcnt(0)")
        a("s_barrier")
        a(f"buffer_atomic_add {R(vONE)}, {R(vCO)}, {SWS}, s33 offen sc1")
        a("s_add_u32 s33, s33, 128")
        a("s_add_u32 s10, s10, 1")
        a("s_add_u32 s14, s14, 7168")
        a(f"s_add_u32 s18, s18, {8*28*1024}")
        a("s_cmp_lt_u32 s10, 64")
        a(f"s_cbranch_scc1 {LOOP}")
        a("s_waitcnt vmcnt(0) lgkmcnt(0)")
        a(f"s_branch {done}")
        retry_block()
        return
    a(f"v_add_u32 v4, s25, {R(vUL)}")
    for c in range(2):
        for u in range(2):
            for hb in range(2):
                a(f"ds_read_b128 {R(U+(c*2+u)*8+4*hb,4)}, v4 offset:{(2*u+hb)*2048 + c*1024}")
    stamp(a, 7)
    poll_warn(a, "P", CAN, vWA, "s31", "0xff", fail, 3)
    a("s_waitcnt lgkmcnt(0)")
    stamp(a, 3)
    PF = a.new("L_B_pf"); PR = a.new("L_B_pretry")
    a.lab(PF)
    a(f"buffer_load_dwordx4 {R(P,4)}, v1, {SWS}, s15 offen sc1")
    a(f"buffer_load_dwordx4 {R(P+4,4)}, v1, {SWS}, s15 offen offset:1024 sc1")
    a(f"buffer_load_dwordx4 {R(P+8,4)}, {R(vPM)}, {SWS}, s16 offen sc1")
    def sm(u, c):
        z = R(YB + 8 * c, 8) if u == 2 else R(U + (c * 2 + u) * 8, 8)
        pa = P + (8 if u == 2 else 4 * u)
        a(f"v_smfmac_f32_16x16x64_bf16 {R(ACC+4*c,4)}, {R(pa,4)}, {z}, {R(vIDX)}")
    a("s_waitcnt vmcnt(2)")
    sm(0, 0); a(f"v_max3_u32 v4, {R(P)}, {R(P+1)}, {R(P+2)}")
    sm(0, 1)
    a("s_waitcnt vmcnt(1)")
    a(f"v_max3_u32 v4, v4, {R(P+3)}, {R(P+4)}")
    sm(1, 0); a(f"v_max3_u32 v4, v4, {R(P+5)}, {R(P+6)}")
    sm(1, 1)
    a("s_waitcnt vmcnt(0)")
    a(f"v_max3_u32 v4, v4, {R(P+7)}, {R(P+8)}")
    sm(2, 0); a(f"v_max3_u32 v4, v4, {R(P+9)}, {R(P+10)}")
    sm(2, 1); a(f"v_max_u32 v4, v4, {R(P+11)}")
    a("v_cmp_eq_u32 vcc, -1, v4")
    a(f"s_cbranch_vccnz {PR}")
    a.nop(5)
    for r in range(4): a(f"v_permlane32_swap_b32 {R(ACC+r)}, {R(ACC+4+r)}")
    for r in range(4): a(f"v_add_f32 {R(ACC+r)}, {R(ACC+r)}, {R(ACC+4+r)}")
    a(f"ds_write_b128 {R(vRW)}, {R(ACC,4)}")
    a("s_waitcnt lgkmcnt(0)")
    stamp(a, 4)
    a("s_barrier")
    SK2 = a.new("L_B_nored")
    a("s_add_u32 s13, s30, 128")
    a("s_cmp_ge_u32 s8, 2")
    a(f"s_cbranch_scc1 {SK2}")
    x = P
    def warn(pt):
        if OPT["warnB"] == pt: a(f"buffer_store_dword {R(vZERO)}, {R(vWS)}, {SWS}, s13 offen {stf}")
    warn(0)
    a(f"ds_read2st64_b32 {R(x,2)}, {R(vR0)} offset0:0 offset1:5")
    a(f"ds_read2st64_b32 {R(x+2,2)}, {R(vR1)} offset0:0 offset1:5")
    a(f"ds_read2st64_b32 {R(x+4,2)}, {R(vR0)} offset0:10 offset1:15")
    a(f"ds_read2st64_b32 {R(x+6,2)}, {R(vR1)} offset0:10 offset1:15")
    a("s_add_u32 s11, s14, 7168")
    a(f"s_add_u32 s12, s11, {WS_MG - WS_MF}")
    a("s_waitcnt lgkmcnt(2)")
    warn(1)
    a(f"v_add_f32 {R(x)}, {R(x)}, {R(x+1)}")
    a(f"v_add_f32 {R(x+2)}, {R(x+2)}, {R(x+3)}")
    a("s_waitcnt lgkmcnt(0)")
    a(f"v_add_f32 {R(x+4)}, {R(x+4)}, {R(x+5)}")
    a(f"v_add_f32 {R(x+6)}, {R(x+6)}, {R(x+7)}")
    a(f"v_add_f32 {R(x)}, {R(x)}, {R(x+4)}")
    a(f"v_add_f32 {R(x+2)}, {R(x+2)}, {R(x+6)}")
    a(f"v_cvt_pk_bf16_f32 {R(x)}, {R(x)}, {R(x+2)}")
    a(f"v_min_u32 {R(x)}, -2, {R(x)}")
    warn(2)
    a(f"buffer_store_dword {R(x)}, {R(vMS)}, {SWS}, s11 offen {stf}")
    warn(3)
    a(f"buffer_store_dword {R(x)}, {R(vMS)}, {SWS}, s12 offen sc1")
    a.lab(SK2)
    stamp(a, 5)
    win_prefetch()
    zero_acc()
    stamp(a, 6)
    a("s_add_u32 s10, s10, 1")
    a("s_cmp_ge_u32 s10, 63")
    a(f"s_cbranch_scc1 {done}")
    a("s_add_u32 s14, s14, 7168")
    a("s_add_u32 s15, s15, 8192")
    a("s_add_u32 s16, s16, 2048")
    a("s_add_u32 s30, s30, 128")
    a("s_add_u32 s31, s31, 512")
    a("s_xor_b32 s25, s25, 32768")
    a(f"s_branch {LOOP}")
    retry_block()
    a.lab(PR)
    a("s_mov_b32 s72, 5")
    a("s_add_u32 s19, s19, 1")
    a(f"s_cmp_gt_u32 s19, {SPIN_MAX * 64}")
    a(f"s_cbranch_scc1 {fail}")
    a("s_add_u32 s71, s71, 1")
    a.nop(8)
    zero_acc(2)
    a(f"s_branch {PF}")
```

```python
from asmlib import *
from layouts import *
import struct
SWS = "s[4:7]"
def f32bits(x): return "0x%08x" % struct.unpack("<I", struct.pack("<f", x))[0]
LOG2E = 1.4426950408889634

def srd(a, base, karg_off, size):
    a(f"s_load_dwordx2 s[{base}:{base+1}], s[0:1], {karg_off}")
    return [f"s_and_b32 s{base+1}, s{base+1}, 0xffff", f"s_mov_b32 s{base+2}, {size}", f"s_mov_b32 s{base+3}, 0x00020000"]

def gen_k1(a):
    a("s_cmp_ge_u32 s2, 256")
    a("s_cbranch_scc1 K1_exit")
    post = []
    post += srd(a, 4, 104, 0x10000000)
    post += srd(a, 12, 0, 2048 * 896)
    post += srd(a, 16, 8, 8 * 896)
    post += srd(a, 20, 16, 448 * 8192)
    post += srd(a, 24, 24, 448 * 8192)
    post += srd(a, 28, 32, 448 * 8192)
    post += srd(a, 32, 40, 4096 * 896)
    post += srd(a, 36, 64, 448 * 3584)
    post += srd(a, 40, 72, 448 * 3584)
    post += srd(a, 44, 80, 1792 * 896)
    a("v_lshrrev_b32 v4, 6, v0")
    a("v_and_b32 v0, 63, v0")
    a("s_nop 0")
    a("v_readfirstlane_b32 s8, v4")
    a("v_lshlrev_b32 v1, 4, v0")
    a("v_and_b32 v2, 15, v0")
    a("v_lshrrev_b32 v3, 4, v0")
    a("s_waitcnt lgkmcnt(0)")
    for x in post: a(x)
    a("s_cmp_ge_u32 s2, %d" % NPIECE)
    a("s_cbranch_scc1 K1_noinit")
    a("s_mul_i32 s9, s2, %d" % PIECE)
    a(f"s_add_u32 s9, s9, {WS_MF}")
    a("s_and_b32 s10, s2, 63")
    a("s_cmp_lg_u32 s10, 0")
    a("s_cbranch_scc1 K1_fill")
    a("s_cmp_ge_u32 s2, 128")
    a("s_cbranch_scc1 K1_fill")
    a("s_cmp_lg_u32 s8, 0")
    a("s_cbranch_scc1 K1_noinit")
    a("v_and_b32 v4, 7, v0")
    a("v_mul_u32_u24 v4, 896, v4")
    a("v_lshrrev_b32 v5, 5, v0")
    a("v_lshl_add_u32 v4, v5, 6, v4")
    a("v_bfe_u32 v5, v0, 3, 1")
    a("v_lshl_add_u32 v4, v5, 5, v4")
    a("v_bfe_u32 v5, v0, 4, 1")
    a("v_lshl_add_u32 v4, v5, 4, v4")
    for t in range(7): a(f"buffer_load_dwordx4 {R(16+4*t,4)}, v4, s[16:19], 0 offen offset:{t*128}")
    a("s_waitcnt vmcnt(0)")
    for t in range(7):
        a(f"s_add_u32 s10, s9, {t*1024}")
        a(f"buffer_store_dwordx4 {R(16+4*t,4)}, v1, {SWS}, s10 offen")
    a("s_branch K1_noinit")
    a.lab("K1_fill")
    a("s_cmp_ge_u32 s2, %d" % NPIECE_FF)
    a("s_cselect_b32 s10, 0, -1")
    for k in range(4): a(f"v_mov_b32 v{16+k}, s10")
    a("s_lshl_b32 s11, s8, 10")
    a("s_add_u32 s11, s11, s9")
    a(f"buffer_store_dwordx4 v[16:19], v1, {SWS}, s11 offen")
    a("s_cmp_eq_u32 s8, 3")
    a("s_cbranch_scc1 K1_noinit")
    a("s_add_u32 s11, s11, 4096")
    a(f"buffer_store_dwordx4 v[16:19], v1, {SWS}, s11 offen")
    a.lab("K1_noinit")
    a("s_and_b32 s9, s2, 7")
    a("s_lshr_b32 s10, s2, 3")
    a("s_cmp_ge_u32 s10, 28")
    a("s_cbranch_scc1 K1_misc")
    a("s_mul_i32 s11, s10, 37")
    a("s_lshr_b32 s11, s11, 8")
    a("s_mul_i32 s48, s11, 7")
    a("s_sub_u32 s48, s10, s48")
    a("s_lshl_b32 s9, s9, 2")
    a("s_add_u32 s9, s9, s11")
    a("s_lshr_b32 s49, s9, 1")
    ACC = 16; LQ = 128; RK = 256
    a("v_lshlrev_b32 v4, 13, v2")
    a("v_lshl_add_u32 v4, v3, 4, v4")
    a("s_lshl_b32 s50, s49, 9")
    a("s_lshl_b32 s11, s48, 19")
    a("s_add_u32 s51, s11, s50")
    for dt in range(4): a(f"s_add_u32 s{52+dt}, s51, {dt*16*8192}")
    a("s_mul_i32 s11, s49, 28")
    a("s_mul_i32 s56, s8, 7")
    a("s_add_u32 s11, s11, s56")
    a("s_mul_i32 s11, s11, 14")
    a("s_lshl_b32 s57, s48, 1")
    a("s_add_u32 s11, s11, s57")
    a("s_lshl_b32 s58, s11, 10")
    a("s_and_b32 s11, s9, 1")
    a("s_cmp_eq_u32 s11, 1")
    a("s_cbranch_scc1 K1_B")
    def epilogue(scale, wsbase):
        a.nop(8)
        if scale:
            a(f"v_mov_b32 v6, {f32bits(scale)}")
            a("v_mov_b32 v7, v6")
            for k in range(0, 112, 2): a(f"v_pk_mul_f32 {R(ACC+k,2)}, {R(ACC+k,2)}, v[6:7]")
        for kt in range(2):
            for ci in range(7):
                t0 = ACC + 4 * ((2*kt) * 7 + ci); t1 = ACC + 4 * ((2*kt+1) * 7 + ci)
                o = 8 + 4 * ((kt * 7 + ci) & 1)
                a(f"v_cvt_pk_bf16_f32 {R(o)}, {R(t0)}, {R(t0+1)}")
                a(f"v_cvt_pk_bf16_f32 {R(o+1)}, {R(t1)}, {R(t1+1)}")
                a(f"v_cvt_pk_bf16_f32 {R(o+2)}, {R(t0+2)}, {R(t0+3)}")
                a(f"v_cvt_pk_bf16_f32 {R(o+3)}, {R(t1+2)}, {R(t1+3)}")
                a(f"s_add_u32 s11, s58, {wsbase + (ci*14 + kt)*1024}")
                a(f"buffer_store_dwordx4 {R(o,4)}, v1, {SWS}, s11 offen")
    a("s_mul_i32 s11, s8, %d" % (112 * 8192))
    a("s_add_u32 s59, s11, s50")
    for ci in range(7): a(f"s_add_u32 s{60+ci}, s59, {ci*16*8192}")
    def a_loads(ks):
        for dt in range(4): a(f"buffer_load_dwordx4 {R(LQ+16*ks+4*dt,4)}, v4, s[20:23], s{52+dt} offen offset:{ks*64}")
        for ci in range(7): a(f"buffer_load_dwordx4 {R(RK+28*ks+4*ci,4)}, v4, s[24:27], s{60+ci} offen offset:{ks*64}")
    PRE = 5
    for ks in range(PRE): a_loads(ks)
    nout = PRE
    for ks in range(8):
        issued = min(8, PRE + ks)
        a(f"s_waitcnt vmcnt({11*(issued-ks-1)})")
        for dt in range(4):
            for ci in range(7):
                d = ACC + 4 * (dt * 7 + ci)
                c = "0" if ks == 0 else R(d, 4)
                a(f"v_mfma_f32_16x16x32_bf16 {R(d,4)}, {R(LQ+16*ks+4*dt,4)}, {R(RK+28*ks+4*ci,4)}, {c}")
        if PRE + ks < 8: a_loads(PRE + ks)
    epilogue(LOG2E / 16.0, WS_AF)
    a("s_branch K1_exit")
    a.lab("K1_B")
    for ks in range(8):
        for dt in range(4): a(f"buffer_load_dwordx4 {R(LQ+16*ks+4*dt,4)}, v4, s[28:31], s{52+dt} offen offset:{ks*64}")
    a("v_mul_u32_u24 v5, 74, v0")
    a("v_lshrrev_b32 v5, 10, v5")
    a("v_mul_u32_u24 v6, 14, v5")
    a("v_sub_u32 v6, v0, v6")
    a("v_mul_u32_u24 v5, 896, v5")
    a("v_lshl_add_u32 v5, v6, 4, v5")
    a("s_mul_i32 s59, s49, %d" % (256 * 896))
    a("s_mul_i32 s11, s8, 224")
    a("s_add_u32 s59, s59, s11")
    a("s_mul_i32 s60, s8, 34816")
    a("v_mul_u32_u24 v6, 2176, v3")
    a("v_bfe_u32 v7, v0, 2, 2")
    a("v_mul_u32_u24 v7, 224, v7")
    a("v_add_u32 v6, v6, v7")
    a("v_and_b32 v7, 3, v0")
    a("v_lshl_add_u32 v6, v7, 3, v6")
    a("v_add_u32 v6, s60, v6")
    def wo_dma(q):
        for blk in range(16):
            a(f"s_add_u32 s11, s60, {(q & 1)*17408 + blk*1088}")
            a("s_mov_b32 m0, s11")
            a(f"s_add_u32 s61, s59, {(64*q + 4*blk)*896}")
            a("buffer_load_dwordx4 v5, s[32:35], s61 offen lds")
    wo_dma(0); wo_dma(1)
    BF0 = 256
    def tr_reads(ks):
        q, kl = ks >> 1, ks & 1
        for ci in range(7):
            for hf in range(2):
                a(f"ds_read_b64_tr_b16 {R(BF0+28*(ks&1)+4*ci+2*hf,2)}, v6 offset:{(q&1)*17408 + (8*kl+hf)*1088 + 32*ci}")
    for ks in range(8):
        q, kl = ks >> 1, ks & 1
        if kl == 0:
            a(f"s_waitcnt vmcnt({16 if q < 3 else 0})" if q > 0 or True else "")
            tr_reads(ks); tr_reads(ks + 1)
        a(f"s_waitcnt lgkmcnt({14 if kl == 0 else 0})")
        for dt in range(4):
            for ci in range(7):
                d = ACC + 4 * (dt * 7 + ci)
                c = "0" if ks == 0 else R(d, 4)
                a(f"v_mfma_f32_16x16x32_bf16 {R(d,4)}, {R(LQ+16*ks+4*dt,4)}, {R(BF0+28*(ks&1)+4*ci,4)}, {c}")
        if kl == 1 and q + 2 < 4:
            wo_dma(q + 2)
    epilogue(None, WS_BF)
    a("s_branch K1_exit")
    a.lab("K1_misc")
    a("s_sub_u32 s10, s10, 28")
    a("s_lshl_b32 s10, s10, 3")
    a("s_add_u32 s10, s10, s9")
    a("s_lshl_b32 s48, s10, 2")
    a("s_add_u32 s48, s48, s8")
    RAW = 16; FV = 80
    a("v_mul_u32_u24 v4, 896, v2")
    a("v_lshl_add_u32 v4, v3, 3, v4")
    a("s_mul_i32 s49, s48, %d" % (16 * 896))
    for kt in range(14):
        for t in range(2):
            a(f"buffer_load_dwordx2 {R(RAW+4*kt+2*t,2)}, v4, s[12:15], s49 offen offset:{kt*64+t*32}")
    a("v_mul_u32_u24 v5, 74, v0")
    a("v_lshrrev_b32 v5, 10, v5")
    a("v_mul_u32_u24 v6, 14, v5")
    a("v_sub_u32 v6, v0, v6")
    a("v_lshlrev_b32 v6, 4, v6")
    a("v_mul_u32_u24 v7, 3584, v5")
    a("v_add_u32 v7, v7, v6")
    a("v_mul_u32_u24 v5, 896, v5")
    a("v_add_u32 v5, v5, v6")
    a("s_mul_i32 s60, s8, %d" % (3 * 8704))
    a("v_mul_u32_u24 v6, 1088, v3")
    a("v_bfe_u32 v8, v0, 2, 2")
    a("v_mul_u32_u24 v8, 224, v8")
    a("v_add_u32 v6, v6, v8")
    a("v_and_b32 v8, 3, v0")
    a("v_lshl_add_u32 v6, v8, 3, v6")
    a("v_add_u32 v6, s60, v6")
    def unit_dma(k, slot):
        L1 = a.new("K1_u")
        a(f"s_add_u32 s50, s48, {128*k}")
        a(f"s_mov_b32 s{66+3*slot}, -1")
        a("s_cmp_ge_u32 s50, 672")
        a(f"s_cbranch_scc1 {L1}_done")
        a("s_cmp_ge_u32 s50, 448")
        a(f"s_cbranch_scc1 {L1}_down")
        a("s_cmp_ge_u32 s50, 224")
        a("s_cselect_b32 s51, 1, 0")
        a("s_mul_i32 s52, s51, 224")
        a("s_sub_u32 s50, s50, s52")
        a("s_lshr_b32 s52, s50, 4")
        a("s_and_b32 s53, s50, 15")
        a(f"s_mov_b32 s{64+3*slot}, s52")
        a(f"s_mov_b32 s{65+3*slot}, s53")
        a(f"s_mov_b32 s{66+3*slot}, s51")
        a("s_mul_i32 s54, s52, %d" % (32 * 3584))
        a("s_mul_i32 s55, s53, 224")
        a("s_add_u32 s54, s54, s55")
        a("s_cmp_eq_u32 s51, 1")
        a(f"s_cbranch_scc1 {L1}_up")
        for blk in range(8):
            a(f"s_add_u32 s11, s60, {slot*8704 + blk*1088}"); a("s_mov_b32 m0, s11")
            a(f"s_add_u32 s55, s54, {blk*4*3584}")
            a("buffer_load_dwordx4 v7, s[36:39], s55 offen lds")
        a(f"s_branch {L1}_done")
        a.lab(f"{L1}_up")
        for blk in range(8):
            a(f"s_add_u32 s11, s60, {slot*8704 + blk*1088}"); a("s_mov_b32 m0, s11")
            a(f"s_add_u32 s55, s54, {blk*4*3584}")
            a("buffer_load_dwordx4 v7, s[40:43], s55 offen lds")
        a(f"s_branch {L1}_done")
        a.lab(f"{L1}_down")
        a("s_sub_u32 s50, s50, 448")
        a("s_lshr_b32 s52, s50, 2")
        a("s_and_b32 s53, s50, 3")
        a(f"s_mov_b32 s{64+3*slot}, s52")
        a(f"s_mov_b32 s{65+3*slot}, s53")
        a(f"s_mov_b32 s{66+3*slot}, 2")
        a("s_mul_i32 s54, s52, %d" % (32 * 896))
        a("s_mul_i32 s55, s53, 224")
        a("s_add_u32 s54, s54, s55")
        for blk in range(8):
            a(f"s_add_u32 s11, s60, {slot*8704 + blk*1088}"); a("s_mov_b32 m0, s11")
            a(f"s_add_u32 s55, s54, {blk*4*896}")
            a("buffer_load_dwordx4 v5, s[44:47], s55 offen lds")
        a.lab(f"{L1}_done")
    def unit_out(slot):
        L1 = a.new("K1_o")
        kt, cg, kind = f"s{64+3*slot}", f"s{65+3*slot}", f"s{66+3*slot}"
        a(f"s_cmp_eq_u32 {kind}, -1")
        a(f"s_cbranch_scc1 {L1}_done")
        for i in range(7):
            for t in range(2):
                a(f"ds_read_b64_tr_b16 {R(200+4*i+2*t,2)}, v6 offset:{slot*8704 + 4*t*1088 + 32*i}")
        a("s_waitcnt lgkmcnt(0)")
        for i in range(7): a(f"v_swap_b32 {R(200+4*i+1)}, {R(200+4*i+2)}")
        a(f"s_mul_i32 s50, {cg}, 7")
        for i in range(7):
            a(f"s_add_u32 s51, s50, {i}")
            a(f"s_cmp_eq_u32 {kind}, 2")
            a(f"s_cbranch_scc1 {L1}_d{i}")
            a("s_lshr_b32 s52, s51, 1")
            a("s_lshl_b32 s52, s52, 2")
            a("s_and_b32 s53, s51, 1")
            a("s_add_u32 s52, s52, s53")
            a(f"s_lshl_b32 s53, {kind}, 1")
            a("s_add_u32 s52, s52, s53")
            a("s_mul_i32 s52, s52, 14")
            a(f"s_add_u32 s52, s52, {kt}")
            a("s_lshl_b32 s52, s52, 10")
            a(f"s_add_u32 s52, s52, {WS_WGF}")
            a(f"s_branch {L1}_s{i}")
            a.lab(f"{L1}_d{i}")
            a("s_mul_i32 s52, s51, 56")
            a(f"s_add_u32 s52, s52, {kt}")
            a("s_lshl_b32 s52, s52, 10")
            a(f"s_add_u32 s52, s52, {WS_WDF}")
            a.lab(f"{L1}_s{i}")
            a(f"buffer_store_dwordx4 {R(200+4*i,4)}, v1, {SWS}, s52 offen")
        a("s_nop 1")
        a.lab(f"{L1}_done")
    for k in range(3): unit_dma(k, k)
    a("s_waitcnt vmcnt(24)")
    for kt in range(14):
        for t in range(2):
            for d in range(2):
                r = RAW + 4*kt + 2*t + d; f = FV + 8*kt + 4*t + 2*d
                a(f"v_lshlrev_b32 {R(f)}, 16, {R(r)}")
                a(f"v_and_b32 {R(f+1)}, 0xffff0000, {R(r)}")
    a(f"v_pk_add_f32 v[8:9], {R(FV,2)}, {R(FV+2,2)}")
    for k in range(4, 112, 2): a(f"v_pk_add_f32 v[8:9], v[8:9], {R(FV+k,2)}")
    a("v_add_f32 v8, v8, v9")
    def allred(reg, tmp, op):
        a(f"v_mov_b32 {R(tmp)}, {R(reg)}")
        a("s_nop 1")
        a(f"v_permlane32_swap_b32 {R(reg)}, {R(tmp)}")
        a(f"{op} {R(reg)}, {R(reg)}, {R(tmp)}")
        a(f"v_mov_b32 {R(tmp)}, {R(reg)}")
        a("s_nop 1")
        a(f"v_permlane16_swap_b32 {R(reg)}, {R(tmp)}")
        a(f"{op} {R(reg)}, {R(reg)}, {R(tmp)}")
    allred(8, 9, "v_add_f32")
    a(f"v_mul_f32 v8, {f32bits(1.0/448)}, v8")
    a("v_mov_b32 v9, v8")
    for k in range(0, 112, 2): a(f"v_pk_add_f32 {R(FV+k,2)}, {R(FV+k,2)}, v[8:9] neg_lo:[0,1] neg_hi:[0,1]")
    a(f"v_pk_mul_f32 v[10:11], {R(FV,2)}, {R(FV,2)}")
    for k in range(2, 112, 2): a(f"v_pk_fma_f32 v[10:11], {R(FV+k,2)}, {R(FV+k,2)}, v[10:11]")
    a("v_add_f32 v10, v10, v11")
    allred(10, 11, "v_add_f32")
    a(f"v_mul_f32 v10, {f32bits(1.0/448)}, v10")
    a(f"v_add_f32 v10, {f32bits(1e-5)}, v10")
    a("v_rsq_f32 v10, v10")
    a("s_nop 0")
    a("v_mov_b32 v11, v10")
    for k in range(0, 112, 2): a(f"v_pk_mul_f32 {R(FV+k,2)}, {R(FV+k,2)}, v[10:11]")
    a("s_mul_i32 s49, s48, 14336")
    for kt in range(14):
        f = FV + 8 * kt; o = RAW + 4 * kt
        a(f"v_cvt_pk_bf16_f32 {R(o)}, {R(f)}, {R(f+1)}")
        a(f"v_cvt_pk_bf16_f32 {R(o+1)}, {R(f+4)}, {R(f+5)}")
        a(f"v_cvt_pk_bf16_f32 {R(o+2)}, {R(f+2)}, {R(f+3)}")
        a(f"v_cvt_pk_bf16_f32 {R(o+3)}, {R(f+6)}, {R(f+7)}")
        a(f"s_add_u32 s11, s49, {WS_XF + kt*1024}")
        a(f"buffer_store_dwordx4 {R(o,4)}, v1, {SWS}, s11 offen")
    a("s_waitcnt vmcnt(0)")
    for k in range(3): unit_out(k)
    for k in range(3): unit_dma(3 + k, k)
    a("s_waitcnt vmcnt(0)")
    for k in range(3): unit_out(k)
    a.lab("K1_exit")
if __name__ == "__main__":
    import sys
    a = Asm(); gen_k1(a)
    pr = hazcheck(a.text()); print("\n".join(pr) if pr else "hazards: none")
    sys.path.insert(0, "work")
    from hb import wrap
    from chk import check
    txt = wrap("k1_kernel", a.text(), vgpr=512, accum=256)
    open("k1.s", "w").write(txt)
    print(check(txt, "k1_kernel"), len(txt))
```

```python
from asmlib import *
from layouts import *
import chain, workers
from workers import *

Q_Y = 14; Q_UT = Q_Y + 448; Q_FA = Q_UT + 224; Q_FB = Q_FA + 32; Q_END = Q_FB + 512
MODE_SPIN = 1 << 10

def gen_k2(a, prof=False):
    a("s_cmp_ge_u32 s2, 256")
    a("s_cbranch_scc1 K2_exit")
    a("s_load_dwordx2 s[4:5], s[0:1], 104")
    a("s_load_dwordx2 s[84:85], s[0:1], 0")
    a("s_load_dwordx2 s[88:89], s[0:1], 88")
    a("s_load_dwordx2 s[80:81], s[0:1], 96")
    a("v_lshrrev_b32 v4, 6, v0")
    a("v_and_b32 v0, 63, v0")
    a("s_getreg_b32 s94, hwreg(HW_REG_XCC_ID)")
    a("v_readfirstlane_b32 s8, v4")
    a("s_and_b32 s94, s94, 0xf")
    a("s_waitcnt lgkmcnt(0)")
    a("s_and_b32 s5, s5, 0xffff"); a("s_mov_b32 s6, 0x10000000"); a("s_mov_b32 s7, 0x00020000")
    a("s_and_b32 s85, s85, 0xffff"); a(f"s_mov_b32 s86, {2048*896}"); a("s_mov_b32 s87, 0x00020000")
    a("s_and_b32 s89, s89, 0xffff"); a(f"s_mov_b32 s90, {2048*896}"); a("s_mov_b32 s91, 0x00020000")
    for r in (19, 70, 71, 72): a(f"s_mov_b32 s{r}, 0")
    worker_setup(a)
    LDSX = 160 * 1024 - 64
    def wg_atomic(soff_text, dst, cmpswap=None):
        L = a.new("K2_at")
        a("s_barrier")
        a("s_cmp_lg_u32 s8, 0")
        a(f"s_cbranch_scc1 {L}")
        a("s_mov_b64 exec, 1")
        a("v_mov_b32 v5, 0")
        a(f"s_mov_b32 s11, {soff_text}")
        if cmpswap is None:
            a("v_mov_b32 v6, 1")
            a(f"buffer_atomic_add v6, v5, {SWS}, s11 offen sc0 sc1")
        else:
            a(f"v_mov_b32 v6, {cmpswap[1]}")
            a(f"v_mov_b32 v7, {cmpswap[0]}")
            a(f"buffer_atomic_cmpswap v[6:7], v5, {SWS}, s11 offen sc0 sc1")
        a("s_waitcnt vmcnt(0)")
        a(f"v_mov_b32 v5, {LDSX}")
        a("ds_write_b32 v5, v6")
        a("s_waitcnt lgkmcnt(0)")
        a("s_mov_b64 exec, -1")
        a.lab(L)
        a("s_barrier")
        a(f"v_mov_b32 v5, {LDSX}")
        a("ds_read_b32 v6, v5")
        a("s_waitcnt lgkmcnt(0)")
        a(f"v_readfirstlane_b32 {dst}, v6")
    def read_mode(dst):
        a("v_mov_b32 v5, 0")
        a(f"s_mov_b32 s11, {CNT_MODE}")
        a(f"buffer_load_dword v6, v5, {SWS}, s11 offen sc1")
        a("s_waitcnt vmcnt(0)")
        a(f"v_readfirstlane_b32 {dst}, v6")
    def wait_mode():
        L = a.new("K2_wm")
        a("s_mov_b32 s19, 0")
        a.lab(L)
        wg_read = a.new("K2_wmr")
        a("s_barrier")
        a("s_cmp_lg_u32 s8, 0")
        a(f"s_cbranch_scc1 {wg_read}")
        a("v_mov_b32 v5, 0")
        a(f"s_mov_b32 s11, {CNT_MODE}")
        a(f"buffer_load_dword v6, v5, {SWS}, s11 offen sc1")
        a("s_waitcnt vmcnt(0)")
        a(f"v_mov_b32 v5, {LDSX}")
        a("ds_write_b32 v5, v6")
        a("s_waitcnt lgkmcnt(0)")
        a.lab(wg_read)
        a("s_barrier")
        a(f"v_mov_b32 v5, {LDSX}")
        a("ds_read_b32 v6, v5")
        a("s_waitcnt lgkmcnt(0)")
        a("v_readfirstlane_b32 s93, v6")
        a("s_cmp_lg_u32 s93, 0")
        a(f"s_cbranch_scc1 {L}_ok")
        a("s_add_u32 s19, s19, 1")
        a(f"s_cmp_lt_u32 s19, {MODE_SPIN}")
        a(f"s_cbranch_scc1 {L}")
        wg_atomic(CNT_MODE, "s93", cmpswap=(0, 2))
        a("s_cmp_eq_u32 s93, 0")
        a("s_cselect_b32 s93, 2, s93")
        a.lab(L + "_ok")
    a("s_mov_b32 s95, 0")
    a("s_cmp_lg_u32 s94, 0")
    a("s_cbranch_scc1 K2_worker")
    wg_atomic(CNT_X, "s9")
    a("s_cmp_ge_u32 s9, 32")
    a("s_cbranch_scc1 K2_worker")
    a("s_cmp_eq_u32 s9, 29")
    a("s_cbranch_scc0 K2_not30")
    wg_atomic(CNT_MODE, "s93", cmpswap=(0, 1))
    a.lab("K2_not30")
    wait_mode()
    a("s_cmp_eq_u32 s93, 2")
    a("s_cbranch_scc1 K2_slowq")
    a("s_cmp_ge_u32 s9, 30")
    a("s_cbranch_scc1 K2_exit")
    a("s_cmp_ge_u32 s9, 16")
    a("s_cbranch_scc1 K2_fastB")
    chain.PROF = prof
    chain.role_A(a, "", "K2_done", "K2_fail")
    a.lab("K2_fastB")
    a("s_sub_u32 s9, s9, 16")
    chain.role_B(a, "", "K2_done", "K2_fail")
    a.lab("K2_slowq")
    a("s_mov_b32 s95, 1")
    wg_atomic(CNT_W, "s9")
    a("s_cmp_ge_u32 s9, 30")
    a("s_cbranch_scc1 K2_loop")
    a("s_cmp_ge_u32 s9, 16")
    a("s_cbranch_scc1 K2_slowB")
    chain.role_A(a, "sc1", "K2_done", "K2_fail")
    a.lab("K2_slowB")
    a("s_sub_u32 s9, s9, 16")
    chain.role_B(a, "sc1", "K2_done", "K2_fail")
    a.lab("K2_worker")
    wg_atomic(CNT_Q, "s92")
    a("s_branch K2_dispatch")
    a.lab("K2_loop")
    worker_setup(a)
    wait_mode()
    a("s_cmp_eq_u32 s93, 2")
    a("s_cbranch_scc0 K2_next")
    a("s_cmp_eq_u32 s95, 0")
    a("s_cbranch_scc1 K2_slowq")
    a.lab("K2_next")
    wg_atomic(CNT_Q, "s92")
    a.lab("K2_dispatch")
    a(f"s_cmp_ge_u32 s92, {Q_END}")
    a("s_cbranch_scc1 K2_done")
    a(f"s_cmp_ge_u32 s92, {Q_FB}")
    a("s_cbranch_scc1 K2_fin")
    a(f"s_cmp_ge_u32 s92, {Q_FA}")
    a("s_cbranch_scc1 K2_fb")
    a(f"s_cmp_ge_u32 s92, {Q_UT}")
    a("s_cbranch_scc1 K2_fa")
    a(f"s_cmp_ge_u32 s92, {Q_Y}")
    a("s_cbranch_scc1 K2_ut")
    a("s_mov_b32 s9, s92")
    chain.role_B(a, "", "K2_loop", "K2_fail", yonly=True)
    a.lab("K2_ut")
    a(f"s_sub_u32 s20, s92, {Q_Y}")
    task_UT(a, "K2_fail")
    a("s_branch K2_loop")
    a.lab("K2_fa")
    a(f"s_sub_u32 s20, s92, {Q_UT}")
    task_FA(a, "K2_fail")
    a("s_branch K2_loop")
    a.lab("K2_fb")
    a(f"s_sub_u32 s20, s92, {Q_FA}")
    task_FB(a, "K2_fail")
    a("s_branch K2_loop")
    a.lab("K2_fin")
    a(f"s_sub_u32 s11, s92, {Q_FB}")
    a("s_lshr_b32 s20, s11, 3")
    a("s_and_b32 s21, s11, 3")
    a("s_bitcmp1_b32 s11, 2")
    a("s_cbranch_scc1 K2_fv")
    task_FS(a, "K2_fail")
    a("s_branch K2_loop")
    a.lab("K2_fv")
    task_FV(a, "K2_fail")
    a("s_branch K2_loop")
    a.lab("K2_fail")
    a("s_mov_b64 exec, -1")
    a("s_and_b32 s81, s81, 0xffff"); a("s_mov_b32 s82, 256"); a("s_mov_b32 s83, 0x00020000")
    a("v_mov_b32 v5, 0"); a("v_mov_b32 v6, 0xdead"); a("v_mov_b32 v7, s2"); a("v_mov_b32 v8, s92"); a("v_mov_b32 v9, s72")
    a("buffer_store_dwordx4 v[6:9], v5, s[80:83], 0 offen")
    a.lab("K2_done")
    a("s_waitcnt vmcnt(0) lgkmcnt(0)")
    a.lab("K2_exit")
```

```python
import numpy as np
D = 448; H = 16; S = 2048; NSEG = 64; SEG = 32; M = 8; F = 1792
PIECE = 7168
WS_XF  = 0x0000000
WS_AF  = 0x0200000
WS_BF  = 0x0900000
WS_MF  = 0x1000000
WS_MG  = WS_MF + 64 * PIECE
WS_PXX = WS_MF + 128 * PIECE
WS_PXM = WS_MF + 200 * PIECE
WS_WM  = WS_MF + 218 * PIECE
WS_WP  = WS_MF + 220 * PIECE
NPIECE_FF = 225
WS_CNT = WS_MF + 225 * PIECE
NPIECE = 229
CNT_Y  = WS_CNT
CNT_P  = WS_CNT + 64 * 128
CNT_U  = WS_CNT + 128 * 128
CNT_T  = WS_CNT + 144 * 128
CNT_H  = WS_CNT + 160 * 128
CNT_G  = WS_CNT + 176 * 128
CNT_Q  = WS_CNT + 208 * 128
CNT_X  = WS_CNT + 209 * 128
CNT_MODE = WS_CNT + 217 * 128
CNT_ALL = WS_CNT + 218 * 128
CNT_W  = WS_CNT + 219 * 128
assert CNT_W + 128 <= WS_CNT + 4 * PIECE
WS_FLG = CNT_Y
WS_YF  = 0x1240000
WS_UF  = 0x2100000
WS_TF  = 0x3D00000
WS_HF  = 0x5900000
WS_GF  = 0x6000000
WS_WGF = 0x6400000
WS_WDF = 0x6800000
WS_PFX = 0x6A00000
WS_PFM = 0x6C00000
WS_END = 0x6E00000
assert WS_MF + NPIECE * PIECE <= WS_YF

def pos(g, j):
    return 16 * ((j >> 1) & 1) + 4 * g + 2 * (j >> 2) + (j & 1)
L = np.arange(64); J = np.arange(8)
POS = pos((L >> 4)[:, None], J[None, :])
N16 = (L & 15)

def f2bf(x):
    x = np.ascontiguousarray(x, dtype=np.float32); u = x.view(np.uint32)
    return ((u + 0x7fff + ((u >> 16) & 1)) >> 16).astype(np.uint16)
def bf2f(u):
    return (np.ascontiguousarray(u).astype(np.uint32) << 16).view(np.float32)
def rbf(x): return bf2f(f2bf(x))

def pack_rows(X):
    R, K = X.shape
    Xr = X.reshape(R // 16, 16, K // 32, 32)
    return np.ascontiguousarray(Xr[:, N16[:, None], :, POS].transpose(2, 3, 0, 1))
def unpack_rows(Fr):
    RT, KT = Fr.shape[:2]
    X = np.empty((RT, 16, KT, 32), Fr.dtype)
    X[:, N16[:, None], :, POS] = Fr.transpose(2, 3, 0, 1)
    return X.reshape(RT * 16, KT * 32)
def pack_XF(xn): return pack_rows(xn)
def pack_WF(W):
    return pack_rows(np.ascontiguousarray(W.T))
def unpack_WF(Fr): return unpack_rows(Fr).T
def pack_UF(U):
    out = np.empty((NSEG, H, 28, 64, 8), U.dtype)
    for h in range(H):
        for s in range(NSEG):
            out[s, h] = pack_rows(np.ascontiguousarray(U[h, 32 * s:32 * s + 32].T))[:, 0]
    return out
def unpack_UF(uf):
    U = np.empty((H, S, D), uf.dtype)
    for h in range(H):
        for s in range(NSEG):
            U[h, 32 * s:32 * s + 32] = unpack_rows(uf[s, h][:, None]).T
    return U
def unpack_TF(tf):
    X = unpack_rows(tf)
    return X.reshape(S, H, D).transpose(1, 0, 2)
def pack_WGF(Wg, Wu):
    g = pack_WF(Wg); u = pack_WF(Wu)
    out = np.empty((56, 4, 14, 64, 8), g.dtype)
    out[:, 0] = g[0::2]; out[:, 1] = g[1::2]; out[:, 2] = u[0::2]; out[:, 3] = u[1::2]
    return out
_i = L & 7; _hh = (L >> 3) & 1; _g = L >> 4
MF_COL = (32 * (_g >> 1) + 16 * _hh + 8 * (_g & 1))[:, None] + J[None, :]
def pack_MF(mem):
    out = np.empty((7, 64, 8), mem.dtype)
    for t in range(7):
        out[t] = mem[_i[:, None], 64 * t + MF_COL]
    return out
def unpack_MF(mf):
    mem = np.empty((8, 448), mf.dtype)
    for t in range(7):
        mem[_i[:, None], 64 * t + MF_COL] = mf[t]
    return mem
def unpack_YF(yf):
    Y = np.zeros((16, 8, 448), np.float32)
    f = bf2f(yf)
    for hp in range(8):
        for ct in range(28):
            for j in range(8):
                jd = j >> 1; e = j & 1
                head = 2 * hp + (jd & 1)
                m = 4 * (L >> 4) + 2 * (jd >> 1) + e
                np.add.at(Y[head], (m & 7, 16 * ct + N16), f[hp, ct, :, j])
    return Y
def unpack_GF(gf):
    G = np.empty((128, 16, 28, 16), gf.dtype)
    r = np.arange(4)
    G[:, N16[:, None], :, (4 * (L >> 4))[:, None] + r[None, :]] = gf.transpose(2, 3, 0, 1)
    return G.reshape(2048, 448)
```

```python
class Item:
    __slots__ = ("text", "kind", "deps", "pos", "name", "lds", "needs", "ldsidx")
    def __init__(self, text, kind, deps=(), name="", lds=0, needs=()):
        self.text = text; self.kind = kind; self.deps = list(deps); self.pos = None; self.name = name
        self.lds = lds
        self.needs = list(needs)
        self.ldsidx = None
def _ismf(line):
    return line.startswith(("v_mfma", "v_smfmac"))
class Sched:
    def __init__(self, a, lds_issued=0):
        self.a = a; self.nlds = lds_issued; self.ldsdone = 0
        self.bulk_extra = 0
        self.em = []
    @property
    def clock(self): return len(self.em)
    def _put(self, line):
        line = line.strip()
        if not line: return
        self.a(line)
        if line.startswith("s_nop"): self.em.append((False, 4 * (int(line.split()[1]) + 1)))
        else: self.em.append((_ismf(line), 4))
    def gap(self, pos, cand_mf):
        t = 0; lastmf = 0 if self.em[pos][0] else None
        cur = self.em[pos][1]
        for k in range(pos + 1, len(self.em)):
            mf, cyc = self.em[k]
            ti = cur
            if mf:
                if lastmf is not None: ti = max(ti, lastmf + 16)
                lastmf = ti
            cur = ti + cyc
            if cur > 200: return cur
        if cand_mf and lastmf is not None: cur = max(cur, lastmf + 16)
        return cur
    def short(self, it):
        k = 0; mf = it.kind in ("mfma", "smf")
        for d, n in it.deps:
            if d.pos is None: return None
            g = self.gap(d.pos, mf)
            need = 4 * (n + 1)
            if g < need: k = max(k, (need - g + 3) // 4)
        for d in it.needs:
            if d.pos is None: return None
        return k
    def ready(self, it): return self.short(it) == 0
    def nop(self, k):
        while k > 0:
            q = min(k, 16); self._put(f"s_nop {q-1}"); k -= q
    def emit(self, it):
        if it.needs:
            last = max(d.ldsidx for d in it.needs)
            if last > self.ldsdone:
                n = self.nlds - last
                self._put(f"s_waitcnt lgkmcnt({min(n, 15)})")
                self.ldsdone = self.nlds - min(n, 15)
        lines = [x for x in it.text.split("\n") if x.strip()]
        for x in lines: self._put(x)
        it.pos = len(self.em) - 1
        if it.lds:
            self.nlds += it.lds; it.ldsidx = self.nlds
    def run(self, main, side, free=lambda it: 1 if it.kind == "smf" else 2, raw_per_gap=1):
        side = list(side)
        def fill(budget, rawb):
            while True:
                pick = None
                for kinds in (("raw",), ("bulk",), ("valu",), ("mfma", "smf")):
                    for it in side:
                        if it.pos is not None or it.kind not in kinds or not self.ready(it): continue
                        if it.kind == "valu" and budget <= 0: continue
                        if it.kind == "raw" and rawb <= 0: continue
                        if it.kind == "bulk" and (rawb <= -self.bulk_extra or budget > 50): continue
                        pick = it; break
                    if pick: break
                if not pick: return
                if pick.kind == "valu":
                    budget -= 1; rawb = 0 if budget < 50 else rawb
                elif pick.kind in ("raw", "bulk"): rawb -= 1
                else: budget = free(pick) if budget < 50 else budget; rawb = raw_per_gap if rawb < 50 else rawb
                self.emit(pick)
        for it in main:
            k = self.short(it)
            while k is None or k > 0:
                before = self.clock
                fill(99, 99)
                k = self.short(it)
                if k is None and self.clock == before:
                    pend = [x for x in side if x.pos is None]
                    bl = [x for x in pend if x.kind == "bulk" and self.ready(x)]
                    if bl: self.emit(bl[0]); k = self.short(it); continue
                    ks = [self.short(x) for x in pend]; ks = [q for q in ks if q]
                    if not ks: raise RuntimeError("deadlock at " + it.text)
                    self.nop(min(ks)); k = self.short(it); continue
                if k is not None and k > 0 and self.clock == before:
                    self.nop(k); k = 0
            self.emit(it)
            if it.kind in ("smf", "mfma"): fill(free(it), raw_per_gap)
        while any(it.pos is None for it in side):
            before = self.clock
            fill(99, 99)
            if self.clock == before:
                bl = [x for x in side if x.pos is None and x.kind == "bulk" and self.ready(x)]
                if bl: self.emit(bl[0]); continue
                ks = [self.short(it) for it in side if it.pos is None]
                ks = [k for k in ks if k]
                if not ks: raise RuntimeError("deadlock in side")
                self.nop(min(ks))
```

```python
from asmlib import *
from layouts import *
from k1 import f32bits
SWS = "s[4:7]"
SPIN_MAX = 1 << 20
OOB = "0x7ffffff0"

class VM:
    def __init__(self, a): self.a = a; self.q = []
    def op(self, text, tag): self.a(text); self.q.append(tag)
    def wait(self, tag):
        idx = [i for i, t in enumerate(self.q) if t == tag]
        if not idx: return
        n = len(self.q) - 1 - idx[-1]
        self.a(f"s_waitcnt vmcnt({min(n, 63)})")
        self.q = self.q[idx[-1] + 1:] if n <= 63 else self.q[-63:]
    def drain(self): self.a("s_waitcnt vmcnt(0)"); self.q = []

vLANE, vL16, vONE, vSIG, vTK = 0, 1, 2, 3, 4
def worker_setup(a):
    a("v_lshlrev_b32 v1, 4, v0")
    a("v_mov_b32 v2, 1")
    a("v_cmp_eq_u32 vcc, 0, v0")
    a("s_cmp_eq_u32 s8, 0")
    a("s_cselect_b64 vcc, vcc, 0")
    a(f"v_mov_b32 v5, {OOB}")
    a("v_cndmask_b32 v3, v5, 0, vcc")

def signal(a, vm, soff):
    vm.op(f"buffer_atomic_add v2, v3, {SWS}, {soff} offen sc1", "sig")

def wait_cnt(a, soff, target, fail, tag="c"):
    L = a.new("L_wc" + tag)
    a("s_mov_b32 s19, 0")
    a("v_mov_b32 v5, 0")
    a.lab(L)
    a(f"buffer_load_dword v6, v5, {SWS}, {soff} offen sc1")
    a("s_waitcnt vmcnt(0)")
    a("v_readfirstlane_b32 s11, v6")
    a(f"s_cmp_ge_u32 s11, {target}")
    a(f"s_cbranch_scc1 {L}_ok")
    a("s_sleep 8")
    a("s_add_u32 s19, s19, 1")
    a(f"s_cmp_le_u32 s19, {SPIN_MAX}")
    a(f"s_cbranch_scc1 {L}")
    a(f"s_branch {fail}")
    a.lab(L + "_ok")

def load_xblock(a, vm, rbreg):
    a(f"s_mul_i32 s11, {rbreg}, {8*14336}")
    a("s_mul_i32 s12, s8, 28672")
    a("s_add_u32 s11, s11, s12")
    a(f"s_add_u32 s11, s11, {WS_XF}")
    for k in range(7):
        a(f"s_add_u32 s13, s12, {k*4096}")
        a("s_mov_b32 m0, s13")
        a(f"s_add_u32 s13, s11, {k*4096}")
        for o in range(4): vm.op(f"buffer_load_dwordx4 v1, {SWS}, s13 offen offset:{o*1024} lds", "x")

ACC = 128; WB = 256; XB = 256 + 64
def gemm_pass(a, vm, orient, stage0, wregs, nxt, vW, vX2, pre_issued=True, hook=None):
    pid = id(wregs)
    for kt in range(14):
        st = (stage0 + kt) & 3; buf = kt & 1
        k3 = kt + 3
        if k3 < 14:
            a(f"v_add_u32 {R(vW+(k3&3))}, {k3*1024}, {R(vL16)}")
            wl = (wregs, k3, (stage0 + k3) & 3, ("w", pid, k3))
        elif nxt is not None:
            a(f"v_add_u32 {R(vW+((k3-14)&3))}, {(k3-14)*1024}, {R(vL16)}")
            wl = (nxt, k3 - 14, (stage0 + k3) & 3, ("w", id(nxt), k3 - 14))
        else: wl = None
        vm.wait(("w", pid, kt))
        a("s_waitcnt lgkmcnt(0)")
        if hook: hook(kt)
        n = 0
        for tt in range(8):
            for ci in range(4):
                d = ACC + 4 * (tt * 4 + ci)
                c = "0" if kt == 0 else R(d, 4)
                x = R(XB + 32 * buf + 4 * tt, 4); w = R(WB + 16 * st + 4 * ci, 4)
                if orient == "U": a(f"v_mfma_f32_16x16x32_bf16 {R(d,4)}, {x}, {w}, {c}")
                else: a(f"v_mfma_f32_16x16x32_bf16 {R(d,4)}, {w}, {x}, {c}")
                n += 1
                if n <= 4 and wl:
                    ci2 = n - 1
                    vm.op(f"buffer_load_dwordx4 {R(WB+16*wl[2]+4*ci2,4)}, {R(vW+(wl[1]&3))}, {SWS}, {wl[0][ci2]} offen", wl[3])
                if 4 < n <= 12 and kt + 1 < 14:
                    t2 = n - 5
                    v = vL16 if t2 < 4 else vX2
                    a(f"ds_read_b128 {R(XB+32*(buf^1)+4*t2,4)}, {R(v)} offset:{((t2&3)*14+kt+1)*1024}")
def first_w(a, vm, wregs, stage0, vW):
    for k in range(3):
        a(f"v_add_u32 {R(vW+k)}, {k*1024}, {R(vL16)}")
    for k in range(3):
        for ci in range(4):
            vm.op(f"buffer_load_dwordx4 {R(WB+16*((stage0+k)&3)+4*ci,4)}, {R(vW+k)}, {SWS}, {wregs[ci]} offen", ("w", id(wregs), k))
def first_x(a, vX2):
    for tt in range(8):
        v = vL16 if tt < 4 else vX2
        a(f"ds_read_b128 {R(XB+4*tt,4)}, {R(v)} offset:{((tt&3)*14)*1024}")

def pack4(a, o, t0, t1):
    a(f"v_cvt_pk_bf16_f32 {R(o)}, {R(t0)}, {R(t0+1)}")
    a(f"v_cvt_pk_bf16_f32 {R(o+1)}, {R(t1)}, {R(t1+1)}")
    a(f"v_cvt_pk_bf16_f32 {R(o+2)}, {R(t0+2)}, {R(t0+3)}")
    a(f"v_cvt_pk_bf16_f32 {R(o+3)}, {R(t1+2)}, {R(t1+3)}")

def task_UT(a, fail):
    vm = VM(a)
    vW, vX2, TMP = 8, 12, 16
    a("s_mul_i32 s21, s20, 2341")
    a("s_lshr_b32 s21, s21, 16")
    a("s_mul_i32 s11, s21, 28")
    a("s_sub_u32 s22, s20, s11")
    load_xblock(a, vm, "s21")
    a(f"v_add_u32 {R(vX2)}, 57344, v1")
    a("s_lshl_b32 s23, s22, 4")
    a("s_lshl_b32 s11, s8, 2")
    a("s_add_u32 s23, s23, s11")
    a("s_mul_i32 s11, s23, 14336")
    ub = ["s24", "s25", "s26", "s27"]; tb = ["s28", "s29", "s30", "s31"]
    for ci in range(4):
        a(f"s_add_u32 {ub[ci]}, s11, {WS_BF + ci*14336}")
        a(f"s_add_u32 {tb[ci]}, s11, {WS_AF + ci*14336}")
    first_w(a, vm, ub, 0, vW)
    vm.wait("x")
    a("s_barrier")
    first_x(a, vX2)
    gemm_pass(a, vm, "U", 0, ub, tb, vW, vX2)
    a.nop(8)
    a("s_mul_i32 s11, s21, %d" % (4 * 448))
    a("s_add_u32 s11, s11, s23")
    a("s_lshl_b32 s32, s11, 10")
    first_x(a, vX2)
    k = 0
    for sl in range(4):
        for ci in range(4):
            o = TMP + 4 * (k & 3); k += 1
            pack4(a, o, ACC + 4 * ((2*sl) * 4 + ci), ACC + 4 * ((2*sl+1) * 4 + ci))
            a(f"s_add_u32 s11, s32, {WS_UF + (sl*448 + ci)*1024}")
            vm.op(f"buffer_store_dwordx4 {R(o,4)}, v1, {SWS}, s11 offen sc1", "ust")
    a("s_lshl_b32 s33, s21, 7")
    a(f"s_add_u32 s33, s33, {CNT_U}")
    def hook(kt):
        if kt == 4:
            vm.wait("ust")
            a("s_barrier")
            signal(a, vm, "s33")
    gemm_pass(a, vm, "T", 2, tb, None, vW, vX2, hook=hook)
    a.nop(8)
    a("s_mul_i32 s11, s21, %d" % (8 * 224))
    a("s_lshr_b32 s12, s23, 1")
    a("s_add_u32 s11, s11, s12")
    a("s_lshl_b32 s32, s11, 10")
    k = 0
    for tt in range(8):
        for cp in range(2):
            o = TMP + 4 * (k & 3); k += 1
            pack4(a, o, ACC + 4 * (tt * 4 + 2*cp), ACC + 4 * (tt * 4 + 2*cp + 1))
            a(f"s_add_u32 s11, s32, {WS_TF + (tt*224 + cp)*1024}")
            vm.op(f"buffer_store_dwordx4 {R(o,4)}, v1, {SWS}, s11 offen sc1", "tst")
    vm.drain()
    a("s_barrier")
    a("s_lshl_b32 s33, s21, 7")
    a(f"s_add_u32 s33, s33, {CNT_T}")
    signal(a, vm, "s33")

def task_FA(a, fail):
    vm = VM(a)
    vW, vX2, TMP = 8, 12, 16
    a("s_mul_i32 s21, s20, 4682")
    a("s_lshr_b32 s21, s21, 16")
    a("s_mul_i32 s11, s21, 14")
    a("s_sub_u32 s22, s20, s11")
    load_xblock(a, vm, "s21")
    a(f"v_add_u32 {R(vX2)}, 57344, v1")
    a("s_lshl_b32 s23, s22, 2")
    a("s_add_u32 s23, s23, s8")
    a("s_mul_i32 s11, s23, %d" % (4 * 14336))
    wb = ["s24", "s25", "s26", "s27"]
    for ci in range(4): a(f"s_add_u32 {wb[ci]}, s11, {WS_WGF + ci*14336}")
    first_w(a, vm, wb, 0, vW)
    vm.wait("x")
    a("s_barrier")
    first_x(a, vX2)
    gemm_pass(a, vm, "T", 0, wb, None, vW, vX2)
    a.nop(8)
    a("s_mul_i32 s11, s21, %d" % (8 * 56))
    a("s_add_u32 s11, s11, s23")
    a("s_lshl_b32 s32, s11, 10")
    for tt in range(8):
        b = ACC + 16 * tt
        for k in range(8): a(f"v_max_f32 {R(b+k)}, 0, {R(b+k)}")
        for k in range(0, 8, 2): a(f"v_pk_mul_f32 {R(b+k,2)}, {R(b+k,2)}, {R(b+8+k,2)}")
        o = TMP + 4 * (tt & 3)
        pack4(a, o, b, b + 4)
        a(f"s_add_u32 s11, s32, {WS_HF + tt*56*1024}")
        vm.op(f"buffer_store_dwordx4 {R(o,4)}, v1, {SWS}, s11 offen sc1", "hst")
    vm.drain()
    a("s_barrier")
    a("s_lshl_b32 s33, s21, 7")
    a(f"s_add_u32 s33, s33, {CNT_H}")
    signal(a, vm, "s33")

def task_FB(a, fail):
    vm = VM(a)
    a("s_lshr_b32 s11, s20, 1")
    a("s_lshl_b32 s11, s11, 7")
    a(f"s_add_u32 s21, s11, {CNT_H}")
    wait_cnt(a, "s21", 14, fail, "h")
    AC = 128; ST = 256
    a("s_mul_i32 s11, s8, %d" % (7 * 56 * 1024))
    for ci in range(7): a(f"s_add_u32 s{24+ci}, s11, {WS_WDF + ci*56*1024}")
    a("s_mul_i32 s11, s20, %d" % (4 * 56 * 1024))
    for tt in range(4): a(f"s_add_u32 s{32+tt}, s11, {WS_HF + tt*56*1024}")
    a("v_mov_b32 v8, v1")
    def loads(stage, tag):
        for ci in range(7): vm.op(f"buffer_load_dwordx4 {R(ST+44*stage+4*ci,4)}, v8, {SWS}, s{24+ci} offen", tag)
        for tt in range(4): vm.op(f"buffer_load_dwordx4 {R(ST+44*stage+28+4*tt,4)}, v8, {SWS}, s{32+tt} offen sc1", tag)
        a("v_add_u32 v8, 1024, v8")
    def mm(stage, first):
        for tt in range(4):
            for ci in range(7):
                d = AC + 4 * (tt * 7 + ci)
                c = "0" if first else R(d, 4)
                a(f"v_mfma_f32_16x16x32_bf16 {R(d,4)}, {R(ST+44*stage+4*ci,4)}, {R(ST+44*stage+28+4*tt,4)}, {c}")
    for k in range(3): loads(k, k)
    loads(3, 3); vm.wait(0); mm(0, True)
    L = a.new("L_fb")
    a("s_mov_b32 s36, 0")
    a.lab(L)
    for j in range(4):
        st = (1 + j) & 3
        loads((st + 3) & 3, "n"); a("s_waitcnt vmcnt(33)"); mm(st, False)
    a("s_add_u32 s36, s36, 1")
    a("s_cmp_lt_u32 s36, 13")
    a(f"s_cbranch_scc1 {L}")
    a("s_waitcnt vmcnt(22)"); mm(1, False)
    a("s_waitcnt vmcnt(11)"); mm(2, False)
    a("s_waitcnt vmcnt(0)"); mm(3, False)
    vm.q = []
    a.nop(8)
    a("s_mul_i32 s11, s20, %d" % (4 * 28 * 512))
    a("s_mul_i32 s12, s8, %d" % (7 * 512))
    a("s_add_u32 s37, s11, s12")
    a("v_lshlrev_b32 v9, 3, v0")
    a(f"v_mov_b32 v10, {f32bits(-1.4426950408889634)}")
    k = 0
    for tt in range(4):
        for ci in range(7):
            d = AC + 4 * (tt * 7 + ci); t = 16 + 8 * (k & 1); k += 1
            for r in range(4): a(f"v_mul_f32 {R(t+r)}, v10, {R(d+r)}")
            for r in range(4): a(f"v_exp_f32 {R(t+r)}, {R(t+r)}")
            a("s_nop 0")
            for r in range(4): a(f"v_add_f32 {R(t+r)}, 1.0, {R(t+r)}")
            for r in range(4): a(f"v_rcp_f32 {R(t+r)}, {R(t+r)}")
            a("s_nop 0")
            for r in range(4): a(f"v_mul_f32 {R(t+r)}, {R(t+r)}, {R(d+r)}")
            a(f"v_cvt_pk_bf16_f32 {R(t+4)}, {R(t)}, {R(t+1)}")
            a(f"v_cvt_pk_bf16_f32 {R(t+5)}, {R(t+2)}, {R(t+3)}")
            a(f"s_add_u32 s11, s37, {WS_GF + (tt*28 + ci)*512}")
            vm.op(f"buffer_store_dwordx2 {R(t+4,2)}, v9, {SWS}, s11 offen sc1", "g")
    vm.drain()
    a("s_barrier")
    a("s_lshl_b32 s33, s20, 7")
    a(f"s_add_u32 s33, s33, {CNT_G}")
    signal(a, vm, "s33")

def allred(a, reg, tmp, op):
    a(f"v_mov_b32 {R(tmp)}, {R(reg)}")
    a("s_nop 1")
    a(f"v_permlane32_swap_b32 {R(reg)}, {R(tmp)}")
    a(f"{op} {R(reg)}, {R(reg)}, {R(tmp)}")
    a(f"v_mov_b32 {R(tmp)}, {R(reg)}")
    a("s_nop 1")
    a(f"v_permlane16_swap_b32 {R(reg)}, {R(tmp)}")
    a(f"{op} {R(reg)}, {R(reg)}, {R(tmp)}")

def poll_lines(a, soff, nl, fail, tag):
    L = a.new("L_pl" + tag)
    a("v_lshlrev_b32 v5, 7, v0")
    a("s_mov_b32 exec_lo, %s" % hex(min((1 << nl) - 1, 0xffffffff)))
    a("s_mov_b32 exec_hi, %s" % hex(((1 << nl) - 1) >> 32))
    a("v_add_u32 v5, 124, v5")
    a("s_mov_b32 s19, 0")
    a.lab(L)
    a(f"buffer_load_dword v6, v5, {SWS}, {soff} offen sc1")
    a("s_waitcnt vmcnt(0)")
    a("v_cmp_eq_u32 vcc, -1, v6")
    a(f"s_cbranch_vccz {L}_ok")
    a("s_sleep 2")
    a("s_add_u32 s19, s19, 1")
    a(f"s_cmp_le_u32 s19, {SPIN_MAX}")
    a(f"s_cbranch_scc1 {L}")
    a(f"s_branch {fail}")
    a.lab(L + "_ok")
    a("s_mov_b64 exec, -1")

def task_FS(a, fail):
    vm = VM(a)
    T = 256; X = 256 + 112; MK = 64; SX = 16; SM = 28
    a("s_lshl_b32 s22, s21, 2")
    a("s_add_u32 s22, s22, s8")
    a("s_lshr_b32 s11, s20, 2")
    a("s_lshl_b32 s11, s11, 7")
    a(f"s_add_u32 s23, s11, {CNT_T}")
    a("s_mul_i32 s24, s20, 28672")
    for kt2 in range(2):
        for q in range(4):
            a(f"s_add_u32 s11, s24, {WS_XF + kt2*14336 + q*4096}")
            for o in range(4):
                kt = 4 * q + o
                if kt < 14: vm.op(f"buffer_load_dwordx4 {R(X+4*(kt2*14+kt),4)}, v1, {SWS}, s11 offen offset:{o*1024}", "x")
    wait_cnt(a, "s23", 28, fail, "t"); vm.q = []
    a("s_mul_i32 s11, s20, 448")
    a("s_mul_i32 s12, s22, 14")
    a("s_add_u32 s11, s11, s12")
    a("s_lshl_b32 s25, s11, 10")
    for tt in range(2):
        for q in range(4):
            a(f"s_add_u32 s11, s25, {WS_TF + tt*224*1024 + q*4096}")
            for o in range(4):
                kt = 4 * q + o
                if kt < 14: vm.op(f"buffer_load_dwordx4 {R(T+4*(tt*14+kt),4)}, v1, {SWS}, s11 offen offset:{o*1024} sc1", "t")
    a("v_and_b32 v8, 15, v0")
    a("v_lshrrev_b32 v9, 4, v0")
    a("v_lshlrev_b32 v10, 2, v9")
    for r in range(4):
        a(f"v_add_u32 v11, {r}, v10")
        a(f"v_cmp_le_u32 s[{40+2*r}:{41+2*r}], v11, v8")
    a("v_cmp_gt_u32 vcc, 2, v9")
    a("v_mov_b32 v12, 0xff800000")
    a("s_nop 0")
    a("v_cndmask_b32 v13, 0, 1.0, vcc")
    a("v_and_b32 v14, 7, v0")
    a("v_lshrrev_b32 v15, 5, v0")
    a("v_lshl_add_u32 v14, v15, 4, v14")
    a("v_lshlrev_b32 v14, 4, v14")
    a("v_and_b32 v15, 1, v9")
    a("v_lshl_add_u32 v14, v15, 3, v14")
    vm.drain()
    for (k, tt, kt2) in ((0, 0, 0), (1, 1, 0), (2, 1, 1)):
        for kt in range(14):
            d = SX + 4 * k; c = "0" if kt == 0 else R(d, 4)
            a(f"v_mfma_f32_16x16x32_bf16 {R(d,4)}, {R(X+4*(kt2*14+kt),4)}, {R(T+4*(tt*14+kt),4)}, {c}")
    a("s_mul_i32 s26, s20, 7168")
    a(f"s_add_u32 s26, s26, {WS_MG}")
    RT = a.new("L_fs_get"); NOF = a.new("L_fs_nof")
    a("s_mov_b32 s27, 0")
    a.lab(RT)
    a("s_cmp_lg_u32 s8, 0")
    a(f"s_cbranch_scc1 {NOF}")
    poll_lines(a, "s26", 56, fail, "fs")
    a("s_mov_b32 m0, 0")
    a("s_add_u32 s11, s26, 4096")
    for o in range(4): a(f"buffer_load_dwordx4 v1, {SWS}, s26 offen offset:{o*1024} sc1 lds")
    a("s_mov_b32 m0, 4096")
    a("s_nop 0")
    for o in range(3): a(f"buffer_load_dwordx4 v1, {SWS}, s11 offen offset:{o*1024} sc1 lds")
    a("s_waitcnt vmcnt(0)")
    a.lab(NOF)
    a("s_barrier")
    for kt in range(14):
        if kt and kt % 2 == 0: a("v_add_u32 v14, 1024, v14")
        o = 128 * (kt & 1)
        a(f"ds_read2_b32 {R(MK+4*kt,2)}, v14 offset0:{o} offset1:{o+32}")
        a(f"ds_read2_b32 {R(MK+4*kt+2,2)}, v14 offset0:{o+1} offset1:{o+33}")
    a("v_subrev_u32 v14, 6144, v14")
    a("s_waitcnt lgkmcnt(0)")
    a(f"v_max3_u32 v5, {R(MK)}, {R(MK+1)}, {R(MK+2)}")
    a(f"v_max_u32 v5, v5, {R(MK+3)}")
    for k in range(4, 56, 2): a(f"v_max3_u32 v5, v5, {R(MK+k)}, {R(MK+k+1)}")
    a("v_cmp_eq_u32 vcc, -1, v5")
    OK = a.new("L_fs_ok")
    a(f"s_cbranch_vccz {OK}")
    a("s_add_u32 s27, s27, 1")
    a(f"s_cmp_gt_u32 s27, {SPIN_MAX}")
    a(f"s_cbranch_scc1 {fail}")
    a("s_barrier")
    a(f"s_branch {RT}")
    a.lab(OK)
    for tt in range(2):
        for kt in range(14):
            d = SM + 4 * tt; c = "0" if kt == 0 else R(d, 4)
            a(f"v_mfma_f32_16x16x32_bf16 {R(d,4)}, {R(MK+4*kt,4)}, {R(T+4*(tt*14+kt),4)}, {c}")
    a.nop(8)
    a("s_lshl_b32 s11, s20, 4")
    a("s_add_u32 s11, s11, s22")
    a("s_lshl_b32 s28, s11, 11")
    a("s_lshl_b32 s11, s20, 3")
    a("s_lshr_b32 s12, s22, 1")
    a("s_add_u32 s11, s11, s12")
    a("s_lshl_b32 s29, s11, 11")
    a("s_and_b32 s11, s22, 1")
    a("s_lshl_b32 s11, s11, 2")
    a("s_add_u32 s29, s29, s11")
    for tt in range(2):
        m = SM + 4 * tt
        x0 = SX if tt == 0 else SX + 4
        x1 = None if tt == 0 else SX + 8
        dg = x0 if tt == 0 else x1
        for r in range(4): a(f"v_cndmask_b32 {R(dg+r)}, v12, {R(dg+r)}, s[{40+2*r}:{41+2*r}]")
        vals = [m + r for r in range(4)] + [x0 + r for r in range(4)] + ([x1 + r for r in range(4)] if x1 else [])
        a(f"v_max3_f32 v36, {R(vals[0])}, {R(vals[1])}, {R(vals[2])}")
        rest = vals[3:]
        while len(rest) >= 2:
            a(f"v_max3_f32 v36, v36, {R(rest[0])}, {R(rest[1])}"); rest = rest[2:]
        if rest: a(f"v_max_f32 v36, v36, {R(rest[0])}")
        allred(a, 36, 37, "v_max_f32")
        for r in vals: a(f"v_sub_f32 {R(r)}, {R(r)}, v36")
        for r in vals: a(f"v_exp_f32 {R(r)}, {R(r)}")
        a("s_nop 0")
        a(f"v_add_f32 v36, {R(m)}, {R(m+1)}")
        a(f"v_add_f32 v37, {R(m+2)}, {R(m+3)}")
        a("v_add_f32 v36, v36, v37")
        a("v_mul_f32 v36, v36, v13")
        for r in vals[4:]: a(f"v_add_f32 v36, v36, {R(r)}")
        allred(a, 36, 37, "v_add_f32")
        a("v_rcp_f32 v36, v36")
        a("s_nop 0")
        for r in vals: a(f"v_mul_f32 {R(r)}, {R(r)}, v36")
        o = 40 + 8 * tt
        a(f"v_cvt_pk_bf16_f32 {R(o)}, {R(x0)}, {R(x0+1)}")
        a(f"v_cvt_pk_bf16_f32 {R(o+2)}, {R(x0+2)}, {R(x0+3)}")
        if x1:
            a(f"v_cvt_pk_bf16_f32 {R(o+1)}, {R(x1)}, {R(x1+1)}")
            a(f"v_cvt_pk_bf16_f32 {R(o+3)}, {R(x1+2)}, {R(x1+3)}")
        else:
            a(f"v_mov_b32 {R(o+1)}, 0"); a(f"v_mov_b32 {R(o+3)}, 0")
        a(f"v_cvt_pk_bf16_f32 {R(o+4)}, {R(m)}, {R(m+1)}")
        a(f"v_cvt_pk_bf16_f32 {R(o+5)}, {R(m+2)}, {R(m+3)}")
        a(f"s_add_u32 s11, s28, {WS_PFX + tt*1024}")
        vm.op(f"buffer_store_dwordx4 {R(o,4)}, v1, {SWS}, s11 offen sc1", "p")
        a(f"s_add_u32 s11, s29, {WS_PFM + tt*1024}")
        vm.op(f"buffer_store_dword {R(o+4)}, v1, {SWS}, s11 offen sc1", "p")
        vm.op(f"buffer_store_dword {R(o+5)}, v1, {SWS}, s11 offen offset:8 sc1", "p")
    vm.drain()
    a("s_barrier")
    a("s_lshl_b32 s11, s20, 7")
    a(f"s_add_u32 s33, s11, {CNT_P}")
    signal(a, vm, "s33")

SX_IN = "s[84:87]"; SOUT = "s[88:91]"
def task_FV(a, fail):
    vm = VM(a)
    U = 256; Y = 256 + 112; PX = 256 + 168; PM = 256 + 200; AC = 64; XG = 16
    a("s_lshr_b32 s11, s20, 2")
    a("s_lshl_b32 s11, s11, 7")
    a(f"s_add_u32 s23, s11, {CNT_U}")
    wait_cnt(a, "s23", 28, fail, "u")
    a("s_mul_i32 s22, s21, 7")
    a("s_lshl_b32 s11, s20, 4")
    a("s_lshl_b32 s12, s8, 2")
    a("s_add_u32 s11, s11, s12")
    a("s_mul_i32 s11, s11, 28")
    a("s_add_u32 s11, s11, s22")
    a("s_lshl_b32 s24, s11, 10")
    for hd in range(4):
        for q in range(2):
            a(f"s_add_u32 s11, s24, {WS_UF + hd*28*1024 + q*4096}")
            for o in range(4):
                i = 4 * q + o
                if i < 7: vm.op(f"buffer_load_dwordx4 {R(U+4*(hd*7+i),4)}, v1, {SWS}, s11 offen offset:{o*1024} sc1", "u")
    a("v_and_b32 v8, 15, v0")
    a("v_lshrrev_b32 v9, 4, v0")
    a("v_mul_u32_u24 v10, 896, v8")
    a("v_lshl_add_u32 v10, v9, 3, v10")
    a("v_lshlrev_b32 v11, 3, v0")
    for q in range(4):
        a(f"s_add_u32 s11, s8, {4*q}")
        a("s_min_u32 s11, s11, 13")
        a("s_lshr_b32 s12, s11, 1")
        a("s_and_b32 s13, s11, 1")
        a("s_add_u32 s12, s12, s22")
        a(f"s_lshl_b32 s{40+q}, s20, 1")
        a(f"s_add_u32 s{40+q}, s{40+q}, s13")
        a(f"s_mul_i32 s{44+q}, s{40+q}, {16*896}")
        a("s_lshl_b32 s13, s12, 5")
        a(f"s_add_u32 s{44+q}, s{44+q}, s13")
        a(f"s_mul_i32 s{40+q}, s{40+q}, 28")
        a(f"s_add_u32 s{40+q}, s{40+q}, s12")
        a(f"s_lshl_b32 s{40+q}, s{40+q}, 9")
        a(f"s_add_u32 s{40+q}, s{40+q}, {WS_GF}")
        vm.op(f"buffer_load_dwordx2 {R(XG+4*q,2)}, v10, {SX_IN}, s{44+q} offen", "xg")
    a("s_lshr_b32 s11, s20, 1")
    a("s_lshl_b32 s11, s11, 7")
    a(f"s_add_u32 s23, s11, {CNT_G}")
    wait_cnt(a, "s23", 1, fail, "g"); vm.q = []
    for q in range(4): vm.op(f"buffer_load_dwordx2 {R(XG+4*q+2,2)}, v11, {SWS}, s{40+q} offen sc1", "xg")
    a("s_lshl_b32 s11, s20, 7")
    a(f"s_add_u32 s23, s11, {CNT_Y}")
    wait_cnt(a, "s23", 14, fail, "y"); vm.q = []
    a("s_lshl_b32 s11, s20, 3")
    a("s_lshl_b32 s12, s8, 1")
    a("s_add_u32 s25, s11, s12")
    a("s_mul_i32 s11, s25, 28")
    a("s_add_u32 s11, s11, s22")
    a("s_lshl_b32 s26, s11, 10")
    for aa in range(2):
        for q in range(2):
            a(f"s_add_u32 s11, s26, {WS_YF + aa*28*1024 + q*4096}")
            for o in range(4):
                i = 4 * q + o
                if i < 7: vm.op(f"buffer_load_dwordx4 {R(Y+4*(aa*7+i),4)}, v1, {SWS}, s11 offen offset:{o*1024} sc1", "y")
    a("s_lshl_b32 s11, s20, 7")
    a(f"s_add_u32 s23, s11, {CNT_P}")
    wait_cnt(a, "s23", 4, fail, "p"); vm.q = []
    a("s_lshl_b32 s11, s20, 4")
    a("s_lshl_b32 s12, s8, 2")
    a("s_add_u32 s11, s11, s12")
    a("s_lshl_b32 s27, s11, 11")
    for q in range(2):
        a(f"s_add_u32 s11, s27, {WS_PFX + q*4096}")
        for o in range(4): vm.op(f"buffer_load_dwordx4 {R(PX+4*(4*q+o),4)}, v1, {SWS}, s11 offen offset:{o*1024} sc1", "p")
    a("s_lshl_b32 s11, s25, 11")
    a(f"s_add_u32 s11, s11, {WS_PFM}")
    for o in range(4): vm.op(f"buffer_load_dwordx4 {R(PM+4*o,4)}, v1, {SWS}, s11 offen offset:{o*1024} sc1", "p")
    vm.drain()
    first = True
    for hd in range(4):
        for i in range(7):
            for tt in range(2):
                d = AC + 4 * (i * 2 + tt); c = "0" if hd == 0 else R(d, 4)
                a(f"v_mfma_f32_16x16x32_bf16 {R(d,4)}, {R(U+4*(hd*7+i),4)}, {R(PX+4*(hd*2+tt),4)}, {c}")
    for aa in range(2):
        for i in range(7):
            for tt in range(2):
                d = AC + 4 * (i * 2 + tt)
                a(f"v_mfma_f32_16x16x32_bf16 {R(d,4)}, {R(Y+4*(aa*7+i),4)}, {R(PM+4*(aa*2+tt),4)}, {R(d,4)}")
    a.nop(8)
    a("s_mul_i32 s11, s8, 14336")
    a("v_add_u32 v12, s11, v1")
    for k in range(14): a(f"ds_write_b128 v12, {R(AC+4*k,4)} offset:{k*1024}")
    a("s_waitcnt lgkmcnt(0)")
    a("s_barrier")
    a("s_lshl_b32 s11, s8, 10")
    a("v_add_u32 v12, s11, v1")
    a("v_add_u32 v13, 28672, v12")
    for q in range(4):
        SK = a.new("L_fv_skip")
        if q == 3:
            a("s_cmp_ge_u32 s8, 2")
            a(f"s_cbranch_scc1 {SK}")
        b = 40
        for w in range(4):
            v = 12 if w < 2 else 13
            a(f"ds_read_b128 {R(b+4*w,4)}, v{v} offset:{(w&1)*14336 + q*4096}")
        a("s_waitcnt lgkmcnt(0)")
        for k in range(0, 4, 2):
            a(f"v_pk_add_f32 {R(b+k,2)}, {R(b+k,2)}, {R(b+4+k,2)}")
            a(f"v_pk_add_f32 {R(b+8+k,2)}, {R(b+8+k,2)}, {R(b+12+k,2)}")
            a(f"v_pk_add_f32 {R(b+k,2)}, {R(b+k,2)}, {R(b+8+k,2)}")
        x = XG + 4 * q; g = x + 2
        for d in range(2):
            a(f"v_lshlrev_b32 {R(b+4+2*d)}, 16, {R(x+d)}")
            a(f"v_and_b32 {R(b+5+2*d)}, 0xffff0000, {R(x+d)}")
            a(f"v_lshlrev_b32 {R(b+8+2*d)}, 16, {R(g+d)}")
            a(f"v_and_b32 {R(b+9+2*d)}, 0xffff0000, {R(g+d)}")
        for r in range(4): a(f"v_fma_f32 {R(b+r)}, {R(b+r)}, {R(b+8+r)}, {R(b+4+r)}")
        a(f"v_cvt_pk_bf16_f32 {R(b+12)}, {R(b)}, {R(b+1)}")
        a(f"v_cvt_pk_bf16_f32 {R(b+13)}, {R(b+2)}, {R(b+3)}")
        a(f"buffer_store_dwordx2 {R(b+12,2)}, v10, {SOUT}, s{44+q} offen")
        a.lab(SK)
    a("s_waitcnt vmcnt(0)")
    a("s_barrier")
```

```python
import sys
sys.path.insert(0, "gen")
from asmlib import *
import k1, k2, chain
NAME = "recurrent_scan__memory_aug_recurrent_mem_tr__glu_gated_reglu__prompt"
def kd(name, vgpr=512, accum=256, sgpr=102):
    return f""".amdhsa_kernel {name}
  .amdhsa_next_free_vgpr {vgpr}
  .amdhsa_next_free_sgpr {sgpr}
  .amdhsa_accum_offset {accum}
  .amdhsa_group_segment_fixed_size 0
  .amdhsa_kernarg_size 112
  .amdhsa_user_sgpr_count 2
  .amdhsa_user_sgpr_kernarg_segment_ptr 1
  .amdhsa_system_sgpr_workgroup_id_x 1
.end_amdhsa_kernel
"""
def compact(t):
    out = []
    for l in t.split("\n"):
        s = l.strip()
        if not s or s.startswith(";"): continue
        out.append(s if s.endswith(":") else " " + s)
    return "\n".join(out) + "\n"
def build(path=None):
    ref = open(f"cdna_kernels/{NAME}.s.ref").read().split("\n")
    hdr = [l for l in ref if l.startswith(";") and "@launch" not in l and "Override launch" not in l and "grid=ceil" not in l]
    hdr = hdr[:hdr.index(next(l for l in hdr if "d_ws" in l and "offset 104" in l)) + 1]
    a1 = Asm(); k1.gen_k1(a1); a2 = Asm(); k2.gen_k2(a2)
    for a in (a1, a2):
        pr = hazcheck(a.text()); assert not pr, pr[:5]
    main = NAME + "_kernel"
    txt = "\n".join(hdr) + "\n"
    txt += "; Two launches: the first builds the fused weights A_h = Wq_h Wk_h^T, B_h = Wv_h Wo_h, the layer norm and the fragment layouts;\n"
    txt += "; the second runs the memory recurrence on one team of workgroups while the others work through a task queue.\n"
    txt += "; (generated by my own generator scripts)\n"
    txt += "; @launch kernel=rs_prep_kernel grid=(256,1,1) block=(256,1,1) lds=139264\n"
    txt += f"; @launch kernel={main} grid=(256,1,1) block=(256,1,1) lds=163840\n"
    txt += '.amdgcn_target "amdgcn-amd-amdhsa--gfx950"\n.text\n'
    for nm, a in (("rs_prep_kernel", a1), (main, a2)):
        txt += f".globl {nm}\n.p2align 8\n.type {nm},@function\n{nm}:\n" + compact(a.text()) + " s_endpgm\n"
    txt += '.section .rodata,"a"\n.p2align 6\n' + kd("rs_prep_kernel") + ".p2align 6\n" + kd(main)
    path = path or f"cdna_kernels/{NAME}.s"
    open(path, "w").write(txt)
    print("written", path, len(txt), "bytes")
if __name__ == "__main__":
    build(sys.argv[1] if len(sys.argv) > 1 else None)
```
